```python
import torch

def _softmax(x, axis=-1):
    return torch.softmax(x, dim=axis)

def _gelu(x):
    return torch.nn.functional.gelu(x, approximate='tanh')

def _silu(x):
    return torch.nn.functional.silu(x)

def _sigmoid(x):
    return torch.sigmoid(x)

def _layernorm(x, axis=-1, eps=1e-05):
    m = x.mean(dim=axis, keepdim=True)
    v = x.var(dim=axis, keepdim=True, unbiased=False)
    return (x - m) / torch.sqrt(v + eps)

def _scatter_add(tgt, idx, src, axis=0):
    return tgt.clone().index_add_(axis, idx, src)

def _segment_sum(src, seg, n):
    out = torch.zeros((n,) + src.shape[1:], dtype=src.dtype)
    return out.index_add_(0, seg, src)

def _pad(x, pw):
    flat = tuple((v for pair in reversed(pw) for v in pair))
    return torch.nn.functional.pad(x, flat)
kernel_name = 'standalone__kv_cache_quant_pre_rope_vs_post_rope__prompt'

def setup_inputs():

    _w = lambda a: (lambda t: t.to(torch.bfloat16) if t.is_floating_point() else t)(torch.as_tensor(a))
    B, Sq, Skv = (1, 2048, 2048)
    H, Dh0 = (4, 128)
    G = 32 if 32 > 0 else Dh0
    G = max(2, G // 2 * 2)
    Dh = max(G, Dh0 // G * G)
    Skv = max(Skv, Sq)
    ng = Dh // G
    bits = 8 if 8 > 1 else 4
    bits = max(2, min(8, bits))
    qmax = (1 << bits) - 1
    half = Dh // 2
    inv = 1.0 / 10000.0 ** (torch.arange(half) / max(1, half))
    ang_k = torch.arange(Skv)[:, None] * inv[None, :]
    ang_q = torch.arange(Skv - Sq, Skv)[:, None] * inv[None, :]
    kc = torch.cat([torch.cos(ang_k), torch.cos(ang_k)], dim=-1)
    ks = torch.cat([torch.sin(ang_k), torch.sin(ang_k)], dim=-1)
    qc = torch.cat([torch.cos(ang_q), torch.cos(ang_q)], dim=-1)
    qs = torch.cat([torch.sin(ang_q), torch.sin(ang_q)], dim=-1)
    qk_i = torch.randint(0, qmax + 1, (B, H, Skv, Dh)).to(torch.int32)
    qv_i = torch.randint(0, qmax + 1, (B, H, Skv, Dh)).to(torch.int32)
    ksc = torch.abs((lambda *s: torch.randn(*s, dtype=torch.bfloat16) * 0.05)(B, H, Skv, ng)) * 0.1 + 0.01
    kzp = torch.full((B, H, Skv, ng), qmax / 2.0)
    vsc = torch.abs((lambda *s: torch.randn(*s, dtype=torch.bfloat16) * 0.05)(B, H, Skv, ng)) * 0.1 + 0.01
    vzp = torch.full((B, H, Skv, ng), qmax / 2.0)
    return {'q': _w((lambda *s: torch.randn(*s, dtype=torch.bfloat16) * 0.8)(B, H, Sq, Dh) * 0.5), 'qk': _w(qk_i), 'k_scales': _w(ksc), 'k_zeros': _w(kzp), 'qv': _w(qv_i), 'v_scales': _w(vsc), 'v_zeros': _w(vzp), 'q_cos': _w(qc), 'q_sin': _w(qs), 'k_cos': _w(kc), 'k_sin': _w(ks)}

def reference(q, qk, k_scales, k_zeros, qv, v_scales, v_zeros, q_cos, q_sin, k_cos, k_sin):
    B, H, Sq, Dh = q.shape
    ng = k_scales.shape[-1]
    G = Dh // ng
    half = Dh // 2
    ks = (lambda x, n, axis: torch.repeat_interleave(x, n, dim=axis))(k_scales, G, axis=-1)
    kz = (lambda x, n, axis: torch.repeat_interleave(x, n, dim=axis))(k_zeros, G, axis=-1)
    k = ((lambda x, dt: x.to(dt))(qk, q.dtype) - kz) * ks
    vs = (lambda x, n, axis: torch.repeat_interleave(x, n, dim=axis))(v_scales, G, axis=-1)
    vz = (lambda x, n, axis: torch.repeat_interleave(x, n, dim=axis))(v_zeros, G, axis=-1)
    v = ((lambda x, dt: x.to(dt))(qv, q.dtype) - vz) * vs
    k1 = k[..., :half].clone()
    k2 = k[..., half:].clone()
    krh = torch.concatenate([-k2, k1], axis=-1)
    kr = k * k_cos[None, None, :, :] + krh * k_sin[None, None, :, :]
    q1 = q[..., :half].clone()
    q2 = q[..., half:].clone()
    qrh = torch.concatenate([-q2, q1], axis=-1)
    qr = q * q_cos[None, None, :, :] + qrh * q_sin[None, None, :, :]
    logits = torch.einsum('bhqd,bhkd->bhqk', qr, kr) * float(Dh) ** (-0.5)
    attn = _softmax(logits, axis=-1)
    out = torch.einsum('bhqk,bhkd->bhqd', attn, v)
    return out
```

```python
MAIN = "standalone__kv_cache_quant_pre_rope_vs_post_rope__prompt_kernel"

HEADER_COMMENT = """; Kernarg layout (112 bytes, ptrs only, base s[0:1]):
"""

class Asm:
    def __init__(self):
        self.L = []
    def __call__(self, s):
        for line in s.strip("\n").split("\n"):
            self.L.append(line.strip() if not line.strip().endswith(":") else line.strip())
    def c(self, s):
        self.L.append("; " + s)
    def text(self):
        return "\n".join(("    " + l if not l.endswith(":") and not l.startswith(".") else l) for l in self.L) + "\n"

def vr(base, n=1):
    return f"v{base}" if n == 1 else f"v[{base}:{base+n-1}]"
def ar(base, n=1):
    return f"a{base}" if n == 1 else f"a[{base}:{base+n-1}]"
def sr(base, n=1):
    return f"s{base}" if n == 1 else f"s[{base}:{base+n-1}]"

def kernel_begin(a, name):
    a.L.append(f".globl {name}")
    a.L.append(".p2align 8")
    a.L.append(f".type {name},@function")
    a.L.append(f"{name}:")

def kd(name, vgpr, accum, sgpr=102):
    return f""".p2align 6
.amdhsa_kernel {name}
  .amdhsa_next_free_vgpr {vgpr}
  .amdhsa_next_free_sgpr {sgpr}
  .amdhsa_accum_offset {accum}
  .amdhsa_group_segment_fixed_size 0
  .amdhsa_kernarg_size 112
  .amdhsa_user_sgpr_count 2
  .amdhsa_user_sgpr_kernarg_segment_ptr 1
  .amdhsa_system_sgpr_workgroup_id_x 1
  .amdhsa_float_denorm_mode_32 3
.end_amdhsa_kernel
"""

def srd(a, dst, ptr, nbytes):
    a(f"s_mov_b32 s{dst}, s{ptr}")
    a(f"s_and_b32 s{dst+1}, s{ptr+1}, 0xffff")
    a(f"s_mov_b32 s{dst+2}, {nbytes}")
    a(f"s_mov_b32 s{dst+3}, 0x20000")
```

```python
import sys, math
from asmlib import *

C_SCALE = (128 ** -0.5) * math.log2(math.e)
import struct
def f2u(x): return struct.unpack("<I", struct.pack("<f", x))[0]

QF_OFF = 4 << 20

def prepass(a, name):
    kernel_begin(a, name)
    a("s_cmp_ge_u32 s2, 256")
    a("s_cbranch_scc1 P_end")
    a("s_load_dwordx16 s[4:19], s[0:1], 0")
    a("s_load_dwordx8 s[20:27], s[0:1], 64")
    a("s_load_dwordx2 s[28:29], s[0:1], 104")
    a("v_lshrrev_b32 v1, 6, v0")
    a("v_and_b32 v0, 63, v0")
    a("v_readfirstlane_b32 s30, v1")
    a("s_lshr_b32 s31, s2, 6")
    a("s_and_b32 s32, s2, 63")
    a("s_waitcnt lgkmcnt(0)")
    srd(a, 36, 28, 6 << 20)
    a("s_cmp_lt_u32 s30, 2")
    a("s_cbranch_scc1 P_V")
    a("s_cmp_lt_u32 s30, 4")
    a("s_cbranch_scc1 P_K")
    def rope_unit(isK):
        a(f"s_sub_u32 s33, s30, {2 if isK else 4}")
        a("s_lshl_b32 s33, s33, 4")
        a("s_lshl_b32 s34, s32, 5")
        a("s_add_u32 s34, s34, s33")
        a("s_lshl_b32 s35, s31, 11")
        a("s_add_u32 s35, s35, s34")
        a("v_and_b32 v1, 15, v0")
        a("v_lshrrev_b32 v2, 4, v0")
        cosp, sinp = (22, 24) if isK else (18, 20)
        srd(a, 40, cosp, 2048 * 256)
        srd(a, 44, sinp, 2048 * 256)
        a("v_lshlrev_b32 v3, 8, v2")
        a("v_lshl_add_u32 v3, v1, 3, v3")
        a("s_lshl_b32 s52, s34, 8")
        if isK:
            srd(a, 48, 6, 4 << 20)
            srd(a, 56, 8, 65536)
            srd(a, 60, 10, 65536)
            a("v_lshlrev_b32 v4, 9, v2")
            a("v_lshl_add_u32 v4, v1, 4, v4")
            a("s_lshl_b32 s53, s35, 9")
            a("s_add_u32 s54, s53, 4096")
            a("v_lshrrev_b32 v5, 3, v1")
            a("v_lshlrev_b32 v5, 1, v5")
            a("v_lshl_add_u32 v5, v2, 3, v5")
            a("s_lshl_b32 s55, s35, 3")
        else:
            srd(a, 48, 4, 2 << 20)
            a("s_lshl_b32 s53, s35, 8")
        R = lambda r: 16 + r * 20
        for r in range(4):
            b = R(r)
            if isK:
                so = "s53" if r < 2 else "s54"
                a(f"buffer_load_dwordx4 {vr(b,4)}, v4, s[48:51], {so} offen offset:{(r%2)*2048}")
                a(f"buffer_load_dwordx4 {vr(b+4,4)}, v4, s[48:51], {so} offen offset:{(r%2)*2048+256}")
            else:
                a(f"buffer_load_dwordx2 {vr(b,2)}, v3, s[48:51], s53 offen offset:{r*1024}")
                a(f"buffer_load_dwordx2 {vr(b+4,2)}, v3, s[48:51], s53 offen offset:{r*1024+128}")
            a(f"buffer_load_dwordx2 {vr(b+8,2)}, v3, s[40:43], s52 offen offset:{r*1024}")
            a(f"buffer_load_dwordx2 {vr(b+10,2)}, v3, s[40:43], s52 offen offset:{r*1024+128}")
            a(f"buffer_load_dwordx2 {vr(b+12,2)}, v3, s[44:47], s52 offen offset:{r*1024}")
            a(f"buffer_load_dwordx2 {vr(b+14,2)}, v3, s[44:47], s52 offen offset:{r*1024+128}")
            if isK:
                for i in range(4): a(f"v_mov_b32 v{b+16+i}, 0")
                a(f"buffer_load_short_d16_hi v{b+16}, v5, s[56:59], s55 offen offset:{r*32}")
                a(f"buffer_load_short_d16_hi v{b+17}, v5, s[56:59], s55 offen offset:{r*32+4}")
                a(f"buffer_load_short_d16_hi v{b+18}, v5, s[60:63], s55 offen offset:{r*32}")
                a(f"buffer_load_short_d16_hi v{b+19}, v5, s[60:63], s55 offen offset:{r*32+4}")
        a("v_lshrrev_b32 v6, 1, v1")
        a("v_lshlrev_b32 v6, 10, v6")
        a("v_and_b32 v7, 1, v1")
        a("v_lshl_add_u32 v6, v7, 9, v6")
        a("v_lshl_add_u32 v6, v2, 4, v6")
        a("s_lshl_b32 s64, s31, 6")
        a("s_add_u32 s64, s64, s32")
        if isK:
            a("s_lshl_b32 s64, s64, 14")
        else:
            a("s_lshl_b32 s64, s64, 13")
            a(f"s_add_u32 s64, s64, {QF_OFF}")
        a("s_lshl_b32 s65, s33, 4")
        a("s_add_u32 s64, s64, s65")
        a(f"s_mov_b32 s66, 0xffff0000")
        if not isK:
            a(f"s_mov_b32 s67, {f2u(C_SCALE):#x}")
        a("s_waitcnt vmcnt(0)")
        for r in range(4):
            b = R(r)
            if isK:
                for j in range(8):
                    a(f"v_cvt_f32_i32 v{100+j}, v{b+j}")
                for j in range(4):
                    a(f"v_sub_f32 v{100+j}, v{100+j}, v{b+18}")
                    a(f"v_sub_f32 v{104+j}, v{104+j}, v{b+19}")
                for j in range(4):
                    a(f"v_mul_f32 v{100+j}, v{100+j}, v{b+16}")
                    a(f"v_mul_f32 v{104+j}, v{104+j}, v{b+17}")
            else:
                for half in range(2):
                    for d in range(2):
                        a(f"v_lshlrev_b32 v{100+4*half+2*d}, 16, v{b+4*half+d}")
                        a(f"v_and_b32 v{100+4*half+2*d+1}, s66, v{b+4*half+d}")
            for g in range(4):
                for d in range(2):
                    a(f"v_lshlrev_b32 v{108+4*g+2*d}, 16, v{b+8+2*g+d}")
                    a(f"v_and_b32 v{108+4*g+2*d+1}, s66, v{b+8+2*g+d}")
            for j in range(4):
                a(f"v_mul_f32 v{124+j}, v{100+j}, v{108+j}")
                a(f"v_mul_f32 v{128+j}, v{104+j}, v{112+j}")
            for j in range(4):
                a(f"v_fma_f32 v{124+j}, -v{104+j}, v{116+j}, v{124+j}")
                a(f"v_fma_f32 v{128+j}, v{100+j}, v{120+j}, v{128+j}")
            if not isK:
                for j in range(8):
                    a(f"v_mul_f32 v{124+j}, s67, v{124+j}")
            o = 132 + 4 * r
            a(f"v_cvt_pk_bf16_f32 v{o}, v124, v125")
            a(f"v_cvt_pk_bf16_f32 v{o+1}, v126, v127")
            a(f"v_cvt_pk_bf16_f32 v{o+2}, v128, v129")
            a(f"v_cvt_pk_bf16_f32 v{o+3}, v130, v131")
            a(f"buffer_store_dwordx4 {vr(o,4)}, v6, s[36:39], s64 offen offset:{r*64}")
        a("s_endpgm")
    rope_unit(False)
    a("P_K:")
    rope_unit(True)
    a("P_V:")
    srd(a, 40, 12, 4 << 20)
    srd(a, 44, 14, 65536)
    srd(a, 48, 16, 65536)
    a("v_and_b32 v1, 31, v0")
    a("v_lshrrev_b32 v2, 5, v0")
    a("v_lshlrev_b32 v3, 11, v2")
    a("v_lshl_add_u32 v3, v1, 4, v3")
    a("v_lshrrev_b32 v4, 3, v1")
    a("v_lshlrev_b32 v4, 1, v4")
    a("v_lshl_add_u32 v4, v2, 5, v4")
    a("s_lshl_b32 s33, s31, 11")
    a("s_lshl_b32 s34, s32, 5")
    a("s_add_u32 s33, s33, s34")
    a("s_lshl_b32 s34, s30, 4")
    a("s_add_u32 s33, s33, s34")
    a("s_lshl_b32 s52, s33, 9")
    a("s_add_u32 s53, s52, 4096")
    a("s_lshl_b32 s54, s33, 3")
    for j in range(8):
        so = "s52" if j < 4 else "s53"
        a(f"buffer_load_dwordx4 {vr(16+4*j,4)}, v3, s[40:43], {so} offen offset:{(j&3)*512}")
    for j in range(8):
        a(f"v_mov_b32 v{48+j}, 0")
        a(f"v_mov_b32 v{56+j}, 0")
    for j in range(8):
        off = (j & 3) * 8 + (j >> 2) * 64
        a(f"buffer_load_short_d16_hi v{48+j}, v4, s[44:47], s54 offen offset:{off}")
        a(f"buffer_load_short_d16_hi v{56+j}, v4, s[48:51], s54 offen offset:{off}")
    a("v_lshlrev_b32 v5, 4, v0")
    a("s_lshl_b32 s64, s31, 6")
    a("s_add_u32 s64, s64, s32")
    a("s_lshl_b32 s64, s64, 14")
    a("s_lshl_b32 s65, s30, 12")
    a("s_add_u32 s64, s64, s65")
    a("s_add_u32 s64, s64, 8192")
    a("s_waitcnt vmcnt(0)")
    for j in range(8):
        for b in range(4):
            r = 16 + 4 * j + b
            a(f"v_cvt_f32_i32 v{r}, v{r}")
        for b in range(4):
            r = 16 + 4 * j + b
            a(f"v_sub_f32 v{r}, v{r}, v{56+j}")
        for b in range(4):
            r = 16 + 4 * j + b
            a(f"v_mul_f32 v{r}, v{r}, v{48+j}")
    for b in range(4):
        o = 64 + 4 * b
        for jj in range(4):
            a(f"v_cvt_pk_bf16_f32 v{o+jj}, v{16+4*(2*jj)+b}, v{16+4*(2*jj+1)+b}")
        a(f"buffer_store_dwordx4 {vr(o,4)}, v5, s[36:39], s64 offen offset:{b*1024}")
    a("P_end:")
    a("s_endpgm")

def attn(a, name):
    kernel_begin(a, name)
    Q, O, S, K, V, P = 16, 48, 112, 128, 160, 192
    M, Lr, T = 200, 201, 202
    a("s_cmp_ge_u32 s2, 256")
    a("s_cbranch_scc1 A_end")
    a("s_load_dwordx2 s[4:5], s[0:1], 104")
    a("s_load_dwordx2 s[6:7], s[0:1], 88")
    a("v_lshrrev_b32 v1, 6, v0")
    a("v_and_b32 v0, 63, v0")
    a("v_readfirstlane_b32 s30, v1")
    a("s_and_b32 s31, s2, 7")
    a("s_lshr_b32 s31, s31, 1")
    a("s_lshr_b32 s32, s2, 3")
    a("s_lshl_b32 s32, s32, 1")
    a("s_and_b32 s33, s2, 1")
    a("s_add_u32 s32, s32, s33")
    a("v_lshlrev_b32 v2, 4, v0")
    a("s_waitcnt lgkmcnt(0)")
    srd(a, 8, 4, 6 << 20)
    srd(a, 12, 6, 2 << 20)
    a("s_lshl_b32 s34, s31, 6")
    a("s_add_u32 s35, s34, s32")
    a("s_lshl_b32 s35, s35, 13")
    a(f"s_add_u32 s35, s35, {QF_OFF}")
    a("s_add_u32 s36, s35, 4096")
    for s in range(8):
        so = "s35" if s < 4 else "s36"
        a(f"buffer_load_dwordx4 {vr(Q+4*s,4)}, v2, s[8:11], {so} offen offset:{(s%4)*1024}")
    for r in range(64):
        a(f"v_mov_b32 v{O+r}, 0")
    a(f"v_mov_b32 v{M}, 0xff800000")
    a(f"v_mov_b32 v{Lr}, 0")
    a("s_lshl_b32 s37, s30, 4")
    a("s_add_u32 s37, s37, s34")
    a("s_lshl_b32 s37, s37, 14")
    a("s_mov_b32 s38, 16")
    a("A_loop:")
    for blk in range(4):
        for i in range(4):
            f = blk * 4 + i
            dst = (K + 4 * f) if f < 8 else (V + 4 * (f - 8))
            a(f"buffer_load_dwordx4 {vr(dst,4)}, v2, s[8:11], s37 offen offset:{i*1024}")
        a("s_add_u32 s37, s37, 4096")
    a("s_waitcnt vmcnt(8)")
    for s in range(8):
        c = "0" if s == 0 else vr(S, 16)
        a(f"v_mfma_f32_32x32x16_bf16 {vr(S,16)}, {vr(K+4*s,4)}, {vr(Q+4*s,4)}, {c}")
    a("s_nop 15")
    a(f"v_max3_f32 v{T}, v{S}, v{S+1}, v{S+2}")
    for i in range(3, 15, 2):
        a(f"v_max3_f32 v{T}, v{T}, v{S+i}, v{S+i+1}")
    a(f"v_max3_f32 v{T}, v{T}, v{S+15}, v{M}")
    a(f"v_mov_b32 v{T+1}, v{T}")
    a("s_nop 1")
    a(f"v_permlane32_swap_b32 v{T}, v{T+1}")
    a("s_nop 1")
    a(f"v_max_f32 v{T}, v{T}, v{T+1}")
    a(f"v_sub_f32 v{T+2}, v{M}, v{T}")
    a(f"v_exp_f32 v{T+2}, v{T+2}")
    a(f"v_mov_b32 v{M}, v{T}")
    for i in range(16):
        a(f"v_sub_f32 v{S+i}, v{S+i}, v{M}")
    for i in range(16):
        a(f"v_exp_f32 v{S+i}, v{S+i}")
    a(f"v_mul_f32 v{Lr}, v{Lr}, v{T+2}")
    for i in range(16):
        a(f"v_add_f32 v{Lr}, v{Lr}, v{S+i}")
    for i in range(8):
        a(f"v_cvt_pk_bf16_f32 v{P+i}, v{S+2*i}, v{S+2*i+1}")
    for r in range(64):
        a(f"v_mul_f32 v{O+r}, v{O+r}, v{T+2}")
    a("s_waitcnt vmcnt(0)")
    for ks in range(2):
        for b in range(4):
            a(f"v_mfma_f32_32x32x16_bf16 {vr(O+16*b,16)}, {vr(V+4*(ks*4+b),4)}, {vr(P+4*ks,4)}, {vr(O+16*b,16)}")
    a("s_sub_u32 s38, s38, 1")
    a("s_cmp_lg_u32 s38, 0")
    a("s_cbranch_scc1 A_loop")
    a("s_nop 15")
    a(f"v_mov_b32 v{T}, v{Lr}")
    a("s_nop 1")
    a(f"v_permlane32_swap_b32 v{T}, v{Lr}")
    a("s_nop 1")
    a(f"v_add_f32 v{Lr}, v{Lr}, v{T}")
    a("v_lshlrev_b32 v3, 2, v0")
    a("s_lshl_b32 s39, s30, 8")
    a("v_add_u32 v4, s39, v3")
    a("v_add_u32 v4, 65536, v4")
    a(f"ds_write_b32 v4, v{M}")
    a("s_waitcnt lgkmcnt(0)")
    a("s_barrier")
    a("v_add_u32 v5, 65536, v3")
    for w in range(4):
        a(f"ds_read_b32 v{T+w}, v5 offset:{w*256}")
    a("s_waitcnt lgkmcnt(0)")
    a(f"v_max3_f32 v{T+4}, v{T}, v{T+1}, v{T+2}")
    a(f"v_max_f32 v{T+4}, v{T+4}, v{T+3}")
    a(f"v_sub_f32 v{T+5}, v{M}, v{T+4}")
    a(f"v_exp_f32 v{T+5}, v{T+5}")
    a("s_nop 0")
    a(f"v_mul_f32 v{Lr}, v{Lr}, v{T+5}")
    for r in range(64):
        a(f"v_mul_f32 v{O+r}, v{O+r}, v{T+5}")
    a(f"ds_write_b32 v4, v{Lr} offset:1024")
    a("s_lshl_b32 s39, s30, 14")
    a("v_add_u32 v6, s39, v2")
    for R in range(4):
        for b in range(4):
            a(f"ds_write_b128 v6, {vr(O+16*b+4*R,4)} offset:{(R*4+b)*1024}")
    a("s_waitcnt lgkmcnt(0)")
    a("s_barrier")
    for w in range(4):
        a(f"ds_read_b32 v{T+w}, v5 offset:{1024+w*256}")
    a("s_lshl_b32 s39, s30, 12")
    a("v_add_u32 v6, s39, v2")
    for src in range(4):
        for b in range(4):
            a(f"ds_read_b128 {vr(K+16*src+4*b,4)}, v6 offset:{src*16384+b*1024}")
    a("s_waitcnt lgkmcnt(0)")
    a(f"v_add_f32 v{T}, v{T}, v{T+1}")
    a(f"v_add_f32 v{T+2}, v{T+2}, v{T+3}")
    a(f"v_add_f32 v{T}, v{T}, v{T+2}")
    a(f"v_rcp_f32 v{T}, v{T}")
    for i in range(16):
        a(f"v_add_f32 v{K+i}, v{K+i}, v{K+16+i}")
        a(f"v_add_f32 v{K+32+i}, v{K+32+i}, v{K+48+i}")
    for i in range(16):
        a(f"v_add_f32 v{K+i}, v{K+i}, v{K+32+i}")
    for i in range(16):
        a(f"v_mul_f32 v{K+i}, v{K+i}, v{T}")
    for rr in range(4):
        a(f"v_cvt_pk_bf16_f32 v{S+2*rr}, v{K+0+rr}, v{K+4+rr}")
        a(f"v_cvt_pk_bf16_f32 v{S+2*rr+1}, v{K+8+rr}, v{K+12+rr}")
    a("v_and_b32 v7, 31, v0")
    a("v_lshlrev_b32 v7, 8, v7")
    a("v_lshrrev_b32 v8, 5, v0")
    a("v_lshl_add_u32 v7, v8, 5, v7")
    a("s_lshl_b32 s40, s31, 11")
    a("s_lshl_b32 s41, s32, 5")
    a("s_add_u32 s40, s40, s41")
    a("s_lshl_b32 s40, s40, 8")
    a("s_lshl_b32 s41, s30, 6")
    a("s_add_u32 s40, s40, s41")
    a(f"buffer_store_dwordx4 {vr(S,4)}, v7, s[12:15], s40 offen")
    a(f"buffer_store_dwordx4 {vr(S+4,4)}, v7, s[12:15], s40 offen offset:16")
    a("A_end:")
    a("s_endpgm")

def main(extra_empty=0):
    a = Asm()
    hdr = HEADER_COMMENT
    hdr += "; @launch kernel=prep_kernel grid=(256,1,1) block=(384,1,1) lds=0\n"
    hdr += "; @launch kernel=attn_kernel grid=(256,1,1) block=(256,1,1) lds=67584\n"
    for i in range(extra_empty):
        hdr += "; @launch kernel=nop_kernel grid=(256,1,1) block=(256,1,1) lds=0\n"
    hdr += '.amdgcn_target "amdgcn-amd-amdhsa--gfx950"\n.text\n'
    prepass(a, "prep_kernel")
    attn(a, "attn_kernel")
    if extra_empty:
        kernel_begin(a, "nop_kernel"); a("s_endpgm")
    out = hdr + a.text() + '.section .rodata,"a"\n' + kd("prep_kernel", 160, 160) + kd("attn_kernel", 256, 256)
    if extra_empty: out += kd("nop_kernel", 8, 8)
    return out

if __name__ == "__main__":
    open("v1.s", "w").write(main(0))
    open("v1_e1.s", "w").write(main(1))
    open("v1_e2.s", "w").write(main(2))
```

```python
import sys, math
from asmlib import *

C_SCALE = (128 ** -0.5) * math.log2(math.e)
import struct
def f2u(x): return struct.unpack("<I", struct.pack("<f", x))[0]

QF_OFF = 4 << 20

def prepass(a, name):
    kernel_begin(a, name)
    a("s_cmp_ge_u32 s2, 256")
    a("s_cbranch_scc1 P_end")
    a("s_load_dwordx16 s[4:19], s[0:1], 0")
    a("s_load_dwordx8 s[20:27], s[0:1], 64")
    a("s_load_dwordx2 s[28:29], s[0:1], 104")
    a("v_lshrrev_b32 v1, 6, v0")
    a("v_and_b32 v0, 63, v0")
    a("v_readfirstlane_b32 s30, v1")
    a("s_lshr_b32 s31, s2, 6")
    a("s_and_b32 s32, s2, 63")
    a("s_waitcnt lgkmcnt(0)")
    srd(a, 36, 28, 6 << 20)
    a("s_cmp_lt_u32 s30, 2")
    a("s_cbranch_scc1 P_V")
    a("s_cmp_lt_u32 s30, 4")
    a("s_cbranch_scc1 P_K")
    def rope_unit(isK):
        a(f"s_sub_u32 s33, s30, {2 if isK else 4}")
        a("s_lshl_b32 s33, s33, 4")
        a("s_lshl_b32 s34, s32, 5")
        a("s_add_u32 s34, s34, s33")
        a("s_lshl_b32 s35, s31, 11")
        a("s_add_u32 s35, s35, s34")
        a("v_and_b32 v1, 15, v0")
        a("v_lshrrev_b32 v2, 4, v0")
        cosp, sinp = (22, 24) if isK else (18, 20)
        srd(a, 40, cosp, 2048 * 256)
        srd(a, 44, sinp, 2048 * 256)
        a("v_lshlrev_b32 v3, 8, v2")
        a("v_lshl_add_u32 v3, v1, 3, v3")
        a("s_lshl_b32 s52, s34, 8")
        if isK:
            srd(a, 48, 6, 4 << 20)
            srd(a, 56, 8, 65536)
            srd(a, 60, 10, 65536)
            a("v_lshlrev_b32 v4, 9, v2")
            a("v_lshl_add_u32 v4, v1, 4, v4")
            a("s_lshl_b32 s53, s35, 9")
            a("s_add_u32 s54, s53, 4096")
            a("v_lshrrev_b32 v5, 3, v1")
            a("v_lshlrev_b32 v5, 1, v5")
            a("v_lshl_add_u32 v5, v2, 3, v5")
            a("s_lshl_b32 s55, s35, 3")
        else:
            srd(a, 48, 4, 2 << 20)
            a("s_lshl_b32 s53, s35, 8")
        R = lambda r: 16 + r * 20
        for r in range(4):
            b = R(r)
            if isK:
                so = "s53" if r < 2 else "s54"
                a(f"buffer_load_dwordx4 {vr(b,4)}, v4, s[48:51], {so} offen offset:{(r%2)*2048}")
                a(f"buffer_load_dwordx4 {vr(b+4,4)}, v4, s[48:51], {so} offen offset:{(r%2)*2048+256}")
            else:
                a(f"buffer_load_dwordx2 {vr(b,2)}, v3, s[48:51], s53 offen offset:{r*1024}")
                a(f"buffer_load_dwordx2 {vr(b+4,2)}, v3, s[48:51], s53 offen offset:{r*1024+128}")
            a(f"buffer_load_dwordx2 {vr(b+8,2)}, v3, s[40:43], s52 offen offset:{r*1024}")
            a(f"buffer_load_dwordx2 {vr(b+10,2)}, v3, s[40:43], s52 offen offset:{r*1024+128}")
            a(f"buffer_load_dwordx2 {vr(b+12,2)}, v3, s[44:47], s52 offen offset:{r*1024}")
            a(f"buffer_load_dwordx2 {vr(b+14,2)}, v3, s[44:47], s52 offen offset:{r*1024+128}")
            if isK:
                for i in range(4): a(f"v_mov_b32 v{b+16+i}, 0")
                a(f"buffer_load_short_d16_hi v{b+16}, v5, s[56:59], s55 offen offset:{r*32}")
                a(f"buffer_load_short_d16_hi v{b+17}, v5, s[56:59], s55 offen offset:{r*32+4}")
                a(f"buffer_load_short_d16_hi v{b+18}, v5, s[60:63], s55 offen offset:{r*32}")
                a(f"buffer_load_short_d16_hi v{b+19}, v5, s[60:63], s55 offen offset:{r*32+4}")
        a("v_lshrrev_b32 v6, 1, v1")
        a("v_lshlrev_b32 v6, 10, v6")
        a("v_and_b32 v7, 1, v1")
        a("v_lshl_add_u32 v6, v7, 9, v6")
        a("v_lshl_add_u32 v6, v2, 4, v6")
        a("s_lshl_b32 s64, s31, 6")
        a("s_add_u32 s64, s64, s32")
        if isK:
            a("s_lshl_b32 s64, s64, 14")
        else:
            a("s_lshl_b32 s64, s64, 13")
            a(f"s_add_u32 s64, s64, {QF_OFF}")
        a("s_lshl_b32 s65, s33, 4")
        a("s_add_u32 s64, s64, s65")
        a(f"s_mov_b32 s66, 0xffff0000")
        if not isK:
            a(f"s_mov_b32 s67, {f2u(C_SCALE):#x}")
        a("s_waitcnt vmcnt(0)")
        for r in range(4):
            b = R(r)
            if isK:
                for j in range(8):
                    a(f"v_cvt_f32_i32 v{100+j}, v{b+j}")
                for j in range(4):
                    a(f"v_sub_f32 v{100+j}, v{100+j}, v{b+18}")
                    a(f"v_sub_f32 v{104+j}, v{104+j}, v{b+19}")
                for j in range(4):
                    a(f"v_mul_f32 v{100+j}, v{100+j}, v{b+16}")
                    a(f"v_mul_f32 v{104+j}, v{104+j}, v{b+17}")
            else:
                for half in range(2):
                    for d in range(2):
                        a(f"v_lshlrev_b32 v{100+4*half+2*d}, 16, v{b+4*half+d}")
                        a(f"v_and_b32 v{100+4*half+2*d+1}, s66, v{b+4*half+d}")
            for g in range(4):
                for d in range(2):
                    a(f"v_lshlrev_b32 v{108+4*g+2*d}, 16, v{b+8+2*g+d}")
                    a(f"v_and_b32 v{108+4*g+2*d+1}, s66, v{b+8+2*g+d}")
            for j in range(4):
                a(f"v_mul_f32 v{124+j}, v{100+j}, v{108+j}")
                a(f"v_mul_f32 v{128+j}, v{104+j}, v{112+j}")
            for j in range(4):
                a(f"v_fma_f32 v{124+j}, -v{104+j}, v{116+j}, v{124+j}")
                a(f"v_fma_f32 v{128+j}, v{100+j}, v{120+j}, v{128+j}")
            if not isK:
                for j in range(8):
                    a(f"v_mul_f32 v{124+j}, s67, v{124+j}")
            o = 132 + 4 * r
            a(f"v_cvt_pk_bf16_f32 v{o}, v124, v125")
            a(f"v_cvt_pk_bf16_f32 v{o+1}, v126, v127")
            a(f"v_cvt_pk_bf16_f32 v{o+2}, v128, v129")
            a(f"v_cvt_pk_bf16_f32 v{o+3}, v130, v131")
            a(f"buffer_store_dwordx4 {vr(o,4)}, v6, s[36:39], s64 offen offset:{r*64}")
        a("s_endpgm")
    rope_unit(False)
    a("P_K:")
    rope_unit(True)
    a("P_V:")
    srd(a, 40, 12, 4 << 20)
    srd(a, 44, 14, 65536)
    srd(a, 48, 16, 65536)
    a("v_and_b32 v1, 31, v0")
    a("v_lshrrev_b32 v2, 5, v0")
    a("v_lshlrev_b32 v3, 11, v2")
    a("v_lshl_add_u32 v3, v1, 4, v3")
    a("v_lshrrev_b32 v4, 3, v1")
    a("v_lshlrev_b32 v4, 1, v4")
    a("v_lshl_add_u32 v4, v2, 5, v4")
    a("s_lshl_b32 s33, s31, 11")
    a("s_lshl_b32 s34, s32, 5")
    a("s_add_u32 s33, s33, s34")
    a("s_lshl_b32 s34, s30, 4")
    a("s_add_u32 s33, s33, s34")
    a("s_lshl_b32 s52, s33, 9")
    a("s_add_u32 s53, s52, 4096")
    a("s_lshl_b32 s54, s33, 3")
    for j in range(8):
        so = "s52" if j < 4 else "s53"
        a(f"buffer_load_dwordx4 {vr(16+4*j,4)}, v3, s[40:43], {so} offen offset:{(j&3)*512}")
    for j in range(8):
        a(f"v_mov_b32 v{48+j}, 0")
        a(f"v_mov_b32 v{56+j}, 0")
    for j in range(8):
        off = (j & 3) * 8 + (j >> 2) * 64
        a(f"buffer_load_short_d16_hi v{48+j}, v4, s[44:47], s54 offen offset:{off}")
        a(f"buffer_load_short_d16_hi v{56+j}, v4, s[48:51], s54 offen offset:{off}")
    a("v_lshlrev_b32 v5, 4, v0")
    a("s_lshl_b32 s64, s31, 6")
    a("s_add_u32 s64, s64, s32")
    a("s_lshl_b32 s64, s64, 14")
    a("s_lshl_b32 s65, s30, 12")
    a("s_add_u32 s64, s64, s65")
    a("s_add_u32 s64, s64, 8192")
    a("s_waitcnt vmcnt(0)")
    for j in range(8):
        for b in range(4):
            r = 16 + 4 * j + b
            a(f"v_cvt_f32_i32 v{r}, v{r}")
        for b in range(4):
            r = 16 + 4 * j + b
            a(f"v_sub_f32 v{r}, v{r}, v{56+j}")
        for b in range(4):
            r = 16 + 4 * j + b
            a(f"v_mul_f32 v{r}, v{r}, v{48+j}")
    for b in range(4):
        o = 64 + 4 * b
        for jj in range(4):
            a(f"v_cvt_pk_bf16_f32 v{o+jj}, v{16+4*(2*jj)+b}, v{16+4*(2*jj+1)+b}")
        a(f"buffer_store_dwordx4 {vr(o,4)}, v5, s[36:39], s64 offen offset:{b*1024}")
    a("P_end:")
    a("s_endpgm")

def attn(a, name):
    kernel_begin(a, name)
    Q, O, S, K, V, P = 16, 48, 112, 128, 160, 192
    M, Lr, T = 200, 201, 202
    a("s_cmp_ge_u32 s2, 256")
    a("s_cbranch_scc1 A_end")
    a("s_load_dwordx2 s[4:5], s[0:1], 104")
    a("s_load_dwordx2 s[6:7], s[0:1], 88")
    a("s_load_dwordx2 s[44:45], s[0:1], 96")
    a("s_getreg_b32 s40, hwreg(HW_REG_XCC_ID)")
    a("s_and_b32 s40, s40, 15")
    a("s_sub_u32 s40, s40, s2"); a("s_and_b32 s40, s40, 7"); a("s_add_u32 s40, s40, 1")
    a("s_waitcnt lgkmcnt(0)")
    a("v_mov_b32 v10, 0"); a("v_mov_b32 v11, s40")
    a("s_cmp_lg_u32 s2, 0"); a("s_cbranch_scc1 D_nw")
    a("global_store_dword v10, v11, s[44:45] sc1")
    a("D_nw:")
    a("s_mov_b32 s41, 0")
    a("D_poll:")
    a("global_load_dword v12, v10, s[44:45] sc1")
    a("s_waitcnt vmcnt(0)")
    a("v_readfirstlane_b32 s42, v12")
    a("s_add_u32 s41, s41, 1"); a("s_cmp_gt_u32 s41, 20000"); a("s_cbranch_scc1 D_go")
    a("s_cmp_eq_u32 s42, 0"); a("s_cbranch_scc1 D_poll")
    a("D_go:")
    a("s_cmp_eq_u32 s42, s40"); a("s_cbranch_scc1 D_done")
    a("s_mov_b32 s41, DELAY")
    a("D_loop:"); a("s_nop 15"); a("s_sub_u32 s41, s41, 1"); a("s_cmp_lg_u32 s41, 0"); a("s_cbranch_scc1 D_loop")
    a("D_done:")
    a("v_lshrrev_b32 v1, 6, v0")
    a("v_and_b32 v0, 63, v0")
    a("v_readfirstlane_b32 s30, v1")
    a("s_and_b32 s31, s2, 7")
    a("s_lshr_b32 s31, s31, 1")
    a("s_lshr_b32 s32, s2, 3")
    a("s_lshl_b32 s32, s32, 1")
    a("s_and_b32 s33, s2, 1")
    a("s_add_u32 s32, s32, s33")
    a("v_lshlrev_b32 v2, 4, v0")
    a("s_waitcnt lgkmcnt(0)")
    srd(a, 8, 4, 6 << 20)
    srd(a, 12, 6, 2 << 20)
    a("s_lshl_b32 s34, s31, 6")
    a("s_add_u32 s35, s34, s32")
    a("s_lshl_b32 s35, s35, 13")
    a(f"s_add_u32 s35, s35, {QF_OFF}")
    a("s_add_u32 s36, s35, 4096")
    for s in range(8):
        so = "s35" if s < 4 else "s36"
        a(f"buffer_load_dwordx4 {vr(Q+4*s,4)}, v2, s[8:11], {so} offen offset:{(s%4)*1024}")
    for r in range(64):
        a(f"v_mov_b32 v{O+r}, 0")
    a(f"v_mov_b32 v{M}, 0xff800000")
    a(f"v_mov_b32 v{Lr}, 0")
    a("s_lshl_b32 s37, s30, 4")
    a("s_add_u32 s37, s37, s34")
    a("s_lshl_b32 s37, s37, 14")
    a("s_mov_b32 s38, 16")
    a("A_loop:")
    for blk in range(4):
        for i in range(4):
            f = blk * 4 + i
            dst = (K + 4 * f) if f < 8 else (V + 4 * (f - 8))
            a(f"buffer_load_dwordx4 {vr(dst,4)}, v2, s[8:11], s37 offen offset:{i*1024}")
        a("s_add_u32 s37, s37, 4096")
    a("s_waitcnt vmcnt(8)")
    for s in range(8):
        c = "0" if s == 0 else vr(S, 16)
        a(f"v_mfma_f32_32x32x16_bf16 {vr(S,16)}, {vr(K+4*s,4)}, {vr(Q+4*s,4)}, {c}")
    a("s_nop 15")
    a(f"v_max3_f32 v{T}, v{S}, v{S+1}, v{S+2}")
    for i in range(3, 15, 2):
        a(f"v_max3_f32 v{T}, v{T}, v{S+i}, v{S+i+1}")
    a(f"v_max3_f32 v{T}, v{T}, v{S+15}, v{M}")
    a(f"v_mov_b32 v{T+1}, v{T}")
    a("s_nop 1")
    a(f"v_permlane32_swap_b32 v{T}, v{T+1}")
    a("s_nop 1")
    a(f"v_max_f32 v{T}, v{T}, v{T+1}")
    a(f"v_sub_f32 v{T+2}, v{M}, v{T}")
    a(f"v_exp_f32 v{T+2}, v{T+2}")
    a(f"v_mov_b32 v{M}, v{T}")
    for i in range(16):
        a(f"v_sub_f32 v{S+i}, v{S+i}, v{M}")
    for i in range(16):
        a(f"v_exp_f32 v{S+i}, v{S+i}")
    a(f"v_mul_f32 v{Lr}, v{Lr}, v{T+2}")
    for i in range(16):
        a(f"v_add_f32 v{Lr}, v{Lr}, v{S+i}")
    for i in range(8):
        a(f"v_cvt_pk_bf16_f32 v{P+i}, v{S+2*i}, v{S+2*i+1}")
    for r in range(64):
        a(f"v_mul_f32 v{O+r}, v{O+r}, v{T+2}")
    a("s_waitcnt vmcnt(0)")
    for ks in range(2):
        for b in range(4):
            a(f"v_mfma_f32_32x32x16_bf16 {vr(O+16*b,16)}, {vr(V+4*(ks*4+b),4)}, {vr(P+4*ks,4)}, {vr(O+16*b,16)}")
    a("s_sub_u32 s38, s38, 1")
    a("s_cmp_lg_u32 s38, 0")
    a("s_cbranch_scc1 A_loop")
    a("s_nop 15")
    a(f"v_mov_b32 v{T}, v{Lr}")
    a("s_nop 1")
    a(f"v_permlane32_swap_b32 v{T}, v{Lr}")
    a("s_nop 1")
    a(f"v_add_f32 v{Lr}, v{Lr}, v{T}")
    a("v_lshlrev_b32 v3, 2, v0")
    a("s_lshl_b32 s39, s30, 8")
    a("v_add_u32 v4, s39, v3")
    a("v_add_u32 v4, 65536, v4")
    a(f"ds_write_b32 v4, v{M}")
    a("s_waitcnt lgkmcnt(0)")
    a("s_barrier")
    a("v_add_u32 v5, 65536, v3")
    for w in range(4):
        a(f"ds_read_b32 v{T+w}, v5 offset:{w*256}")
    a("s_waitcnt lgkmcnt(0)")
    a(f"v_max3_f32 v{T+4}, v{T}, v{T+1}, v{T+2}")
    a(f"v_max_f32 v{T+4}, v{T+4}, v{T+3}")
    a(f"v_sub_f32 v{T+5}, v{M}, v{T+4}")
    a(f"v_exp_f32 v{T+5}, v{T+5}")
    a("s_nop 0")
    a(f"v_mul_f32 v{Lr}, v{Lr}, v{T+5}")
    for r in range(64):
        a(f"v_mul_f32 v{O+r}, v{O+r}, v{T+5}")
    a(f"ds_write_b32 v4, v{Lr} offset:1024")
    a("s_lshl_b32 s39, s30, 14")
    a("v_add_u32 v6, s39, v2")
    for R in range(4):
        for b in range(4):
            a(f"ds_write_b128 v6, {vr(O+16*b+4*R,4)} offset:{(R*4+b)*1024}")
    a("s_waitcnt lgkmcnt(0)")
    a("s_barrier")
    for w in range(4):
        a(f"ds_read_b32 v{T+w}, v5 offset:{1024+w*256}")
    a("s_lshl_b32 s39, s30, 12")
    a("v_add_u32 v6, s39, v2")
    for src in range(4):
        for b in range(4):
            a(f"ds_read_b128 {vr(K+16*src+4*b,4)}, v6 offset:{src*16384+b*1024}")
    a("s_waitcnt lgkmcnt(0)")
    a(f"v_add_f32 v{T}, v{T}, v{T+1}")
    a(f"v_add_f32 v{T+2}, v{T+2}, v{T+3}")
    a(f"v_add_f32 v{T}, v{T}, v{T+2}")
    a(f"v_rcp_f32 v{T}, v{T}")
    for i in range(16):
        a(f"v_add_f32 v{K+i}, v{K+i}, v{K+16+i}")
        a(f"v_add_f32 v{K+32+i}, v{K+32+i}, v{K+48+i}")
    for i in range(16):
        a(f"v_add_f32 v{K+i}, v{K+i}, v{K+32+i}")
    for i in range(16):
        a(f"v_mul_f32 v{K+i}, v{K+i}, v{T}")
    for rr in range(4):
        a(f"v_cvt_pk_bf16_f32 v{S+2*rr}, v{K+0+rr}, v{K+4+rr}")
        a(f"v_cvt_pk_bf16_f32 v{S+2*rr+1}, v{K+8+rr}, v{K+12+rr}")
    a("v_and_b32 v7, 31, v0")
    a("v_lshlrev_b32 v7, 8, v7")
    a("v_lshrrev_b32 v8, 5, v0")
    a("v_lshl_add_u32 v7, v8, 5, v7")
    a("s_lshl_b32 s40, s31, 11")
    a("s_lshl_b32 s41, s32, 5")
    a("s_add_u32 s40, s40, s41")
    a("s_lshl_b32 s40, s40, 8")
    a("s_lshl_b32 s41, s30, 6")
    a("s_add_u32 s40, s40, s41")
    a(f"buffer_store_dwordx4 {vr(S,4)}, v7, s[12:15], s40 offen")
    a(f"buffer_store_dwordx4 {vr(S+4,4)}, v7, s[12:15], s40 offen offset:16")
    a("A_end:")
    a("s_endpgm")

def main(extra_empty=0):
    a = Asm()
    hdr = HEADER_COMMENT
    hdr += "; @launch kernel=prep_kernel grid=(256,1,1) block=(384,1,1) lds=0\n"
    hdr += "; @launch kernel=attn_kernel grid=(256,1,1) block=(256,1,1) lds=67584\n"
    for i in range(extra_empty):
        hdr += "; @launch kernel=nop_kernel grid=(256,1,1) block=(256,1,1) lds=0\n"
    hdr += '.amdgcn_target "amdgcn-amd-amdhsa--gfx950"\n.text\n'
    prepass(a, "prep_kernel")
    attn(a, "attn_kernel")
    if extra_empty:
        kernel_begin(a, "nop_kernel"); a("s_endpgm")
    out = hdr + a.text() + '.section .rodata,"a"\n' + kd("prep_kernel", 160, 160) + kd("attn_kernel", 256, 256)
    if extra_empty: out += kd("nop_kernel", 8, 8)
    return out

if __name__ == "__main__":
    open("v1_xcc.s", "w").write(main(0).replace("DELAY", "300"))
    open("v1_xcc0.s", "w").write(main(0).replace("DELAY", "1"))
```

```python
import sys, math, struct
from asmlib import *
from ir import *

C_SCALE = (128 ** -0.5) * math.log2(math.e)
def f2u(x): return struct.unpack("<I", struct.pack("<f", x))[0]

K_OFF = 0
V_OFF = 2 << 20
M_OFF = 4 << 20
F_OFF = 14 << 20
XK_OFF = F_OFF + (64 << 10)
XM_OFF = F_OFF + (128 << 10)
ST_OFF = 15 << 20
WS_USE = 16 << 20
EC1, EC2 = 0x9E3779B9, 0x7F4A7C15
SPIN = 100000

L16, PW, LW, LR, OUTV = 1, 2, 3, 4, 5
LREG = 8
LT = 12
PST = 20
MT = 28
SB = [48, 64]
OREG = [80, 96, 112, 224]
PBUF = 128
QREG = [160, 192, 160, 192]
ACC = 240
RCV = [80, 92, 104]
STMP = 224
QSTR = 1040
LDS_Q = 0
QSLOT = 8 * QSTR
LDS_P = 4 * QSLOT
LDS_L = LDS_P + 16384
LDS_SC = LDS_L + 4096
LDS_SIZE = LDS_SC + 2048
S_WS, S_OUT = 32, 36
S_W, S_H, S_J, S_QB, S_G = 48, 49, 50, 51, 52
S_EK, S_EM = 54, 56
S_K, S_V, S_SEND, S_RECV = 58, 66, 74, 77
S_OUTO, S_MASK, S_LO, S_RNG = 80, 81, 82, 83
S_BAD, S_T2, S_SPIN = 84, 86, 88
T0, T1, T2, T3 = 89, 90, 91, 92
S_XKA, S_XMA = 93, 94
S_FLG = 95

MPAIRS = list(range(4, 32, 2)) + [40, 42, 44, 46]
ORDER2 = [(0,0),(1,0),(0,1),(1,1),(0,2),(1,2),(0,3),(1,3),(2,0),(2,1),(2,2),(2,3),(3,0),(3,1),(3,2),(3,3)]

def main_sched(cfg):
    order = cfg.get("order", ORDER2)
    N = 16
    seq = cfg.get("seq") or ([("S",0),("S",1),("S",2)] + sum([[("P",n),("S",n+3)] for n in range(13)], []) + [("P",13),("P",14),("P",15)])
    assert len(seq) == 32
    gapS = {}; gapP = {}; mf = []
    sbuf = {}
    for n in range(N):
        sbuf[n] = SB[n] if n < 2 else (STMP if n == 2 else SB[(n + 1) & 1])
    firstT = {}
    for kind, n in seq:
        slot, T = order[n]
        if kind == "S":
            gapS[n] = len(mf)
            for s in range(8):
                mf.append(mfma32(sbuf[n], 32 * T + 4 * s, QREG[slot] + 4 * s, None if s == 0 else sbuf[n], "a", "v")); mf[-1].canon = (n, 0, s)
        else:
            gapP[n] = len(mf)
            first = slot not in firstT
            firstT[slot] = True
            for f in range(8):
                mf.append(mfma32(OREG[slot], 128 + 32 * T + 4 * f, PBUF + 4 * f, None if (first and f == 0) else OREG[slot], "a", "v")); mf[-1].canon = (n, 5, f)
    ops = []
    cur = [None]
    def add(i, rel=0, dl=10**9, deps=(), prio=0):
        i.rel = rel; i.dl = dl; i.deps = list(deps); i.prio = (prio, len(ops)); i.canon = (cur[0][0], cur[0][1], len(ops)); ops.append(i); return i
    WB = cfg.get("wb", 4)
    bar = {}; pw = {}; prd = {}
    items_of = {s: [m for m in range(N) if order[m][0] == s] for s in range(4)}
    lastitem = {s: items_of[s][-1] for s in range(4)}
    def next_writer_gap(n):
        c = [gapS[m] for m in range(n + 1, N) if sbuf[m] == sbuf[n]]
        if n == 2: c = [gapP[items_of[3][0]]]
        return min(c) if c else 10**9
    prev_add = {}; lw = {}
    for n, (slot, T) in enumerate(order):
        Sb = sbuf[n]
        L = gapS[n] + 7
        rel = L + cfg.get("exp_delay", 2)
        rdgrp = gapP[n] - 8
        dbar = rdgrp - 1
        nw = next_writer_gap(n) - 1
        ex = []; cv = []
        cur[0] = (n, 1)
        for r in range(16):
            ex.append(add(v_exp(Sb + r, Sb + r), rel, min(rel + 4 + (r // 8) * 4, dbar - WB - 3, nw - 1)))
        for k in range(8):
            cv.append(add(v_cvtpk(PST + k, Sb + 2 * k, Sb + 2 * k + 1), rel, min(rel + 5 + (k // 4) * 4, dbar - WB - 2, nw),
                          [(ex[2 * k], 1), (ex[2 * k + 1], 1)] + ([(pw[(n - 1, k // 4)], 1)] if n > 0 else [])))
        islast = lastitem[slot] == n
        for r in range(16):
            lr = LREG + slot
            i = v_mov(lr, f"v{Sb}") if (n == items_of[slot][0] and r == 0) else v_add(lr, lr, Sb + r)
            d = [(ex[r], 1)] + ([(prev_add[slot], 0)] if slot in prev_add else [])
            dl = min(nw, dbar - WB if islast else nw)
            prev_add[slot] = add(i, rel, dl, d)
        cur[0] = (n, 2)
        for ks in range(2):
            d = [(cv[4 * ks + k], 1) for k in range(4)]
            if n >= 2: d.append((bar[n - 1], 1))
            w_ = ds_write128(PW, PST + 4 * ks, (n & 1) * 8192 + ks * 1024)
            w_.rd += [f"Pfree{n&1}"]; w_.wr += [f"Pown{n&1}_{ks}"]
            w_.aux = {"hard": dbar - 2}
            pw[(n, ks)] = add(w_, rel, min(rel + 3 + ks * 6, dbar - WB - 1 + ks), d)
        b = barrier(); b.cost = cfg.get("barcost", 20); b.aux = {"need": [pw[(n, 0)], pw[(n, 1)]] + prd.get(n - 1, [])}
        b.rd += [f"Pown{n&1}_0", f"Pown{n&1}_1"] + [f"Pdone{(n-1)&1}_{f}" for f in range(8)]; b.wr += [f"Pall{n&1}", f"Pfree{(n-1)&1}"]
        wb = max(1, min(WB, dbar - (rel + 8)))
        d = [(pw[(n, 0)], wb), (pw[(n, 1)], wb)] + [(x, 1) for x in prd.get(n - 1, [])]
        brel = max(rel, dbar - cfg.get("bar_early", 0))
        if islast:
            l_ = ds_write32(LW, LREG + slot, slot * 1024); l_.wr += [f"Lown{slot}"]
            lw[slot] = add(l_, rel, dbar - 2, [(prev_add[slot], 1)])
            b.aux["need"].append(lw[slot]); d.append((lw[slot], 2)); b.rd += [f"Lown{slot}"]; b.wr += [f"Lall{slot}"]
        cur[0] = (n, 3)
        bar[n] = add(b, brel, dbar, d)
        prd[n] = []
        cur[0] = (n, 4)
        for f in range(8):
            r_ = ds_read128(PBUF + 4 * f, L16, LDS_P + (n & 1) * 8192 + f * 1024)
            r_.rd += [f"Pall{n&1}"]; r_.wr += [f"Pdone{n&1}_{f}"]
            prd[n].append(add(r_, rdgrp + f, rdgrp + f, [(bar[n], 1)]))
    firstuseK = {}; firstuseV = {}
    for n, (slot, T) in enumerate(order):
        firstuseK.setdefault(T, gapS[n]); firstuseV.setdefault(T, gapP[n])
    chunks = sorted([(firstuseK[T], "K", T) for T in range(4)] + [(firstuseV[T], "V", T) for T in range(4)])
    npre = cfg.get("npre", 3)
    pre = chunks[:npre]
    k = 0
    pace = cfg.get("pace", 2)
    cur[0] = (-1, 0)
    for (g0, kind, T) in chunks[npre:]:
        for s in range(8):
            base = (S_K if kind == "K" else S_V) + 2 * T + (s >> 2)
            dst = (0 if kind == "K" else 128) + 32 * T + 4 * s
            add(buf_load("a", dst, 4, L16, S_WS, f"s{base}", (s & 3) * 1024, cfg.get("kvflags", "sc1")), int(k * pace), min(int(k * pace) + 2, g0 + s - 12))
            k += 1
    for slot in range(1, 4):
        first = items_of[slot][0]
        for s in range(8):
            prevuser = [sl for sl in range(slot) if QREG[sl] == QREG[slot]]
            if prevuser:
                la = lastitem[prevuser[-1]]
                rel = gapS[la] + s + 1
                cur[0] = (la, 7)
            else:
                rel = 0
                cur[0] = (-1, 1)
            add(ds_read128(QREG[slot] + 4 * s, L16, LDS_Q + slot * QSLOT + s * QSTR), rel, max(rel, gapS[first] + s - 6))
    lwg = {}; ops_st = {}
    mdl = cfg.get("msg_dl", [10, 10, 4])
    msp = cfg.get("msg_space", [3, 3, 2])
    for slot in range(4):
        n = lastitem[slot]
        g0 = gapP[n] - 8
        cur[0] = (n, 6)
        r0 = ds_read128(LT, LR, slot * 1024); r0.rd += [f"Lall{slot}"]
        r1 = ds_read128(LT + 4, LR, slot * 1024 + 16); r1.rd += [f"Lall{slot}"]
        prevl = [(lwg[s_], 1) for s_ in lwg]
        r0 = add(r0, g0, g0 + 4, [(bar[n], 1)] + prevl)
        r1 = add(r1, g0, g0 + 4, [(bar[n], 1)] + prevl)
        t = []
        t.append(add(v_add(LT, LT, LT + 1), g0, g0 + 8, [(r0, 4)]))
        t.append(add(v_add(LT + 2, LT + 2, LT + 3), g0, g0 + 8, [(r0, 4)]))
        t.append(add(v_add(LT + 4, LT + 4, LT + 5), g0, g0 + 8, [(r1, 4)]))
        t.append(add(v_add(LT + 6, LT + 6, LT + 7), g0, g0 + 8, [(r1, 4)]))
        u0 = add(v_add(LT, LT, LT + 2), g0, g0 + 9, [(t[0], 0), (t[1], 0)])
        u1 = add(v_add(LT + 4, LT + 4, LT + 6), g0, g0 + 9, [(t[2], 0), (t[3], 0)])
        l = add(v_add(LREG + slot, LT, LT + 4), g0, g0 + 10, [(u0, 0), (u1, 0)])
        c1 = add(I(f"v_subrev_u32 v{LT+1}, s{S_LO}, v{LREG+slot}", "valu", [f"s{S_LO}", f"v{LREG+slot}"], [f"v{LT+1}"]), g0, g0 + 11, [(l, 0)])
        c2 = add(I(f"v_cmp_lt_u32 vcc, s{S_RNG}, v{LT+1}", "valu", [f"s{S_RNG}", f"v{LT+1}"], ["vcc"]), g0, g0 + 11, [(c1, 0)])
        br = add(I(f"s_cbranch_vccnz SLOW_{slot}", "br", ["vcc"], []), g0, g0 + 12, [(c2, 1)])
        lwg[slot] = br
        if slot < 3:
            gm = gapP[n] + 7 + 2
            st = []
            prevs = ops_st.get(slot - 1)
            pairs = [(MT + 0, 0), (MT + 1, 1), (MT + 2, 2), (MT + 4, 3), (MT + 5, 4), (MT + 6, 5), (MT + 8, 6), (MT + 9, 7)]
            cvs = {0: [], 1: [], 2: []}
            for (dst, k_) in pairs:
                g_ = (dst - MT) // 4
                cvs[g_].append(add(v_cvtpk(dst, OREG[slot] + 2 * k_, OREG[slot] + 2 * k_ + 1), gm, gm + mdl[slot] + g_ * msp[slot], [(br, 1)] + ([(prevs[g_], 1)] if prevs else [])))
            cvs[2].append(add(v_mov(MT + 10, f"v{LREG+slot}"), g0, gm + mdl[slot], [(br, 1)] + ([(prevs[2], 1)] if prevs else [])))
            for g_ in range(3):
                d = [(c, 1) for c in cvs[g_]] + ([(st[-1], msp[slot])] if st else [])
                s_ = buf_store(MT + 4 * g_, 4, L16, S_WS, f"s{S_SEND+slot}", g_ * 1024, "sc1")
                s_.aux["hard"] = gm + 1 + mdl[slot] + g_ * msp[slot] + (8 if slot < 2 else 1)
                st.append(add(s_, gm, gm + 1 + mdl[slot] + g_ * msp[slot], d))
            ops_st[slot] = st
    cur[0] = (16, 0)
    rc = cfg.get("recv_gap", [236, 242, 250])
    for sg in range(len(rc)):
        for g in range(3):
            add(buf_load("v", RCV[sg] + 4 * g, 4, L16, S_WS, f"s{S_RECV+sg}", g * 1024, "sc1"), rc[sg], rc[sg] + 3,
                [(x, 1) for x in ops_st[0] + ops_st[1]] + ([(x, 1) for x in ops_st[2]] if sg == 2 else []))
    if cfg.get("mstamps"):
        cur[0] = (99, 0)
        for k, gp in enumerate(cfg["mstamps"]):
            p = MPAIRS[k]
            o = add(I(f"s_memtime s[{p}:{p+1}]", "salu", [], []), gp, gp); o.canon = None
    if cfg.get("stamps"):
        cur[0] = (99, 0)
        for k, gp in enumerate(cfg["stamps"]):
            o = add(I(f"s_memtime s[{14+2*k}:{15+2*k}]", "salu", [], []), gp, gp); o.canon = None
    lin = schedule(mf, ops, cap=cfg.get("cap", 24.0), verbose=True, hspace=cfg.get("hspace", 2))
    verify_dataflow(lin)
    return lin, pre

def build(cfg, fname):
    st = cfg.get("stamps")
    P = []
    def r(t, k="raw", rd=(), wr=()): P.append(I(t, k, rd, wr)); return P[-1]
    def v(t, rd, wr, k="valu"): P.append(V(t, rd, wr, k)); return P[-1]
    if st: r("s_memtime s[96:97]"); r("s_memrealtime s[98:99]")
    r("s_cmp_ge_u32 s2, 256"); r("s_cbranch_scc1 A_end")
    r("s_load_dwordx16 s[4:19], s[0:1], 0"); r("s_load_dwordx8 s[20:27], s[0:1], 64"); r("s_load_dwordx2 s[28:29], s[0:1], 104")
    v("v_lshrrev_b32 v6, 6, v0", [0], [6]); v("v_and_b32 v0, 63, v0", [0], [0])
    v(f"v_readfirstlane_b32 s{S_W}, v6", [6], [f"s{S_W}"])
    r(f"s_and_b32 s{T0}, s2, 7"); r(f"s_lshr_b32 s{T1}, s2, 3")
    r(f"s_lshr_b32 s{S_H}, s{T0}, 1")
    r(f"s_and_b32 s{S_J}, s{T0}, 1"); r(f"s_lshl_b32 s{S_J}, s{S_J}, 1"); r(f"s_and_b32 s{T2}, s{T1}, 1"); r(f"s_add_u32 s{S_J}, s{S_J}, s{T2}")
    r(f"s_lshr_b32 s{S_QB}, s{T1}, 1")
    v("v_and_b32 v6, 7, v0", [0], [6]); v("v_lshrrev_b32 v7, 3, v0", [0], [7])
    v("v_and_b32 v8, 4, v7", [7], [8]); v("v_add_u32 v8, v7, v8", [7, 8], [8])
    v("v_lshlrev_b32 v9, 5, v6", [6], [9]); v("v_lshl_add_u32 v9, v8, 9, v9", [8, 9], [9], "valu8")
    r(f"s_lshl_b32 s{T0}, s{S_J}, 9"); r(f"s_lshl_b32 s{T1}, s{S_QB}, 5"); r(f"s_add_u32 s{T0}, s{T0}, s{T1}")
    r(f"s_and_b32 s{T1}, s{S_W}, 1"); r(f"s_lshl_b32 s{T1}, s{T1}, 2"); r(f"s_lshr_b32 s{T2}, s{S_W}, 1"); r(f"s_lshl_b32 s{T2}, s{T2}, 4")
    r(f"s_add_u32 s{T1}, s{T1}, s{T2}"); r(f"s_add_u32 s{T1}, s{T1}, s{T0}")
    r(f"s_lshl_b32 s{T2}, s{S_H}, 11"); r(f"s_add_u32 s{T3}, s{T2}, s{T1}")
    r(f"s_lshl_b32 s40, s{T3}, 9"); r(f"s_lshl_b32 s41, s{T1}, 8"); r(f"s_lshl_b32 s42, s{T3}, 3")
    v("v_lshrrev_b32 v10, 1, v9", [9], [10]); v("v_add_u32 v10, s41, v10", [10], [10])
    v("v_add_u32 v9, s40, v9", [9], [9])
    v("v_lshlrev_b32 v11, 3, v8", [8], [11]); v("v_add_u32 v11, s42, v11", [11], [11])
    r("s_waitcnt lgkmcnt(0)")
    KA, KB, KC, KS = 128, 136, 144, 160
    kl = []
    for (dst, off) in ((KA, 0), (KA + 4, 16), (KB, 256), (KB + 4, 272)): kl.append(g_load("v", dst, 4, 9, 6, off))
    kl += [g_load("v", KS, 2, 11, 8), g_load("v", KS + 2, 2, 11, 10)]
    kl += [g_load("v", KC, 4, 10, 22, 0), g_load("v", KC + 4, 4, 10, 22, 128), g_load("v", KC + 8, 4, 10, 24, 0), g_load("v", KC + 12, 4, 10, 24, 128)]
    P += kl
    v("v_and_b32 v12, 31, v0", [0], [12]); v("v_lshrrev_b32 v13, 5, v0", [0], [13])
    r(f"s_lshr_b32 s43, s{S_W}, 1"); r(f"s_and_b32 s44, s{S_W}, 1")
    r(f"s_add_u32 s{T2}, s{T2}, s{T0}")
    r(f"s_lshl_b32 s45, s43, 4"); r(f"s_add_u32 s45, s45, s{T2}"); r("s_lshl_b32 s45, s45, 9"); r("s_lshl_b32 s46, s44, 8"); r("s_add_u32 s45, s45, s46")
    v("v_lshlrev_b32 v14, 12, v13", [13], [14]); v("v_lshl_add_u32 v14, v12, 2, v14", [12, 14], [14], "valu8"); v("v_add_u32 v14, s45, v14", [14], [14])
    r(f"s_lshl_b32 s46, s{T2}, 3")
    v("v_lshlrev_b32 v15, 3, v12", [12], [15]); v("v_add_u32 v15, s46, v15", [15], [15])
    VD, VS = 168, 184
    vsl = [g_load("v", VS, 2, 15, 14), g_load("v", VS + 2, 2, 15, 16)]
    P += vsl
    vl = []
    for e in range(2):
        for jj in range(8): vl.append(g_load("v", VD + 8 * e + jj, 1, 14, 12, jj * 512 + e * 128))
    P += vl
    r(f"s_getpc_b64 s[{S_T2}:{S_T2+1}]")
    r("L_pc:", "label")
    r(f"s_lshr_b32 s47, s2, 3"); r("s_lshl_b32 s47, s47, 2"); r(f"s_add_u32 s47, s47, s{S_W}"); r("s_and_b32 s47, s47, 15"); r("s_lshl_b32 s47, s47, 10")
    r(f"s_sub_u32 s{S_T2}, s{S_T2}, L_pc-KSTART"); r(f"s_subb_u32 s{S_T2+1}, s{S_T2+1}, 0")
    v("v_lshlrev_b32 v1, 4, v0", [0], [1])
    v("v_add_u32 v16, s47, v1", [1], [16])
    P.append(g_load("v", 252, 4, 16, S_T2))
    r(f"s_mov_b32 s{S_WS}, s28"); r(f"s_and_b32 s{S_WS+1}, s29, 0xffff"); r(f"s_mov_b32 s{S_WS+2}, {WS_USE}"); r(f"s_mov_b32 s{S_WS+3}, 0x20000")
    r(f"s_mov_b32 s{S_OUT}, s26"); r(f"s_and_b32 s{S_OUT+1}, s27, 0xffff"); r(f"s_mov_b32 s{S_OUT+2}, {2<<20}"); r(f"s_mov_b32 s{S_OUT+3}, 0x20000")
    r(f"s_lshl_b32 s{S_G}, s{S_H}, 2"); r(f"s_add_u32 s{S_G}, s{S_G}, s{S_J}")
    r(f"s_lshl_b32 s{S_XKA}, s{S_G}, 7"); r(f"s_add_u32 s{S_XKA}, s{S_XKA}, {XK_OFF}")
    r(f"s_lshl_b32 s53, s{S_H}, 4"); r(f"s_add_u32 s53, s53, s{S_QB}")
    r(f"s_lshl_b32 s{S_XMA}, s53, 7"); r(f"s_add_u32 s{S_XMA}, s{S_XMA}, {XM_OFF}")
    r(f"s_load_dwordx2 s[{S_EK}:{S_EK+1}], s[28:29], s{S_XKA}"); r(f"s_load_dwordx2 s[{S_EM}:{S_EM+1}], s[28:29], s{S_XMA}")
    v("v_lshlrev_b32 v17, 4, v6", [6], [17]); v("v_lshl_add_u32 v17, v7, 8, v17", [7, 17], [17], "valu8")
    r(f"s_lshl_b32 s{T0}, s{S_QB}, 7"); r(f"s_lshl_b32 s{T1}, s{S_W}, 3"); r(f"s_add_u32 s{T0}, s{T0}, s{T1}"); r(f"s_lshl_b32 s{T0}, s{T0}, 8")
    r(f"s_lshl_b32 s{T1}, s{S_H}, 19"); r(f"s_add_u32 s4, s4, s{T1}"); r("s_addc_u32 s5, s5, 0")
    QD = 32
    ql = {}
    for sg in range(4):
        r(f"s_xor_b32 s{T1}, s{S_J}, {[2,3,1,0][sg]}"); r(f"s_lshl_b32 s{T1}, s{T1}, 13"); r(f"s_add_u32 s{T1}, s{T1}, s{T0}")
        v(f"v_add_u32 v{18+sg}, s{T1}, v17", [17], [18 + sg])
        b = QD + 24 * sg
        ql[sg] = [g_load("v", b, 4, 18 + sg, 4, 0), g_load("v", b + 4, 4, 18 + sg, 4, 128), g_load("v", b + 8, 4, 18 + sg, 18, 0), g_load("v", b + 12, 4, 18 + sg, 18, 128),
                  g_load("v", b + 16, 4, 18 + sg, 20, 0), g_load("v", b + 20, 4, 18 + sg, 20, 128)]
        P += ql[sg]
    if st: r("s_memtime s[100:101]")
    r(f"s_mov_b32 s{S_MASK}, 0xffff0000"); r("s_mov_b32 s40, 0x05040100"); r("s_mov_b32 s41, 0x07060302"); r(f"s_mov_b32 s42, {f2u(C_SCALE):#x}")
    r(f"s_mov_b32 s{S_SPIN}, 0")
    lo, hi = f2u(2.0 ** -60), f2u(2.0 ** 60)
    r(f"s_mov_b32 s{S_LO}, {lo:#x}"); r(f"s_mov_b32 s{S_RNG}, {hi-lo:#x}")
    v("v_lshlrev_b32 v22, 10, v6", [6], [22]); v("v_lshl_add_u32 v22, v7, 4, v22", [7, 22], [22], "valu8")
    r(f"s_lshl_b32 s{T0}, s{S_G}, 4"); r(f"s_add_u32 s{T0}, s{T0}, s{S_QB}")
    r(f"s_lshl_b32 s{S_FLG}, s{T0}, 7"); r(f"s_add_u32 s{S_FLG}, s{S_FLG}, {F_OFF}")
    r(f"s_lshl_b32 s{T0}, s{T0}, 13"); r(f"s_lshl_b32 s{T1}, s{S_W}, 7"); r(f"s_add_u32 s46, s{T0}, s{T1}")
    if K_OFF: r(f"s_add_u32 s46, s46, {K_OFF}")
    r(f"s_lshl_b32 s{T0}, s{S_G}, 2"); r(f"s_and_b32 s{T1}, s{S_QB}, 3"); r(f"s_add_u32 s{T0}, s{T0}, s{T1}"); r(f"s_lshl_b32 s{T0}, s{T0}, 2")
    r(f"s_lshl_b32 s{T1}, s44, 1"); r(f"s_add_u32 s{T0}, s{T0}, s{T1}"); r(f"s_lshl_b32 s{T0}, s{T0}, 13")
    r(f"s_lshr_b32 s{T1}, s{S_QB}, 2"); r(f"s_lshl_b32 s{T1}, s{T1}, 1"); r(f"s_add_u32 s{T1}, s{T1}, s43"); r(f"s_lshl_b32 s{T1}, s{T1}, 10")
    r(f"s_add_u32 s{T0}, s{T0}, s{T1}"); r(f"s_add_u32 s47, s{T0}, {V_OFF}"); r(f"s_add_u32 s45, s47, 8192")
    r(f"s_lshl_b32 s{T0}, s{S_W}, 9"); r(f"s_add_u32 s{T0}, s{T0}, {LDS_SC}")
    v("v_lshlrev_b32 v23, 3, v12", [12], [23]); v(f"v_add_u32 v23, s{T0}, v23", [23], [23])
    r(f"s_lshl_b32 s{T1}, s43, 7"); r(f"s_add_u32 s{T0}, s{T0}, s{T1}"); r(f"s_lshl_b32 s{T1}, s44, 2"); r(f"s_add_u32 s{T0}, s{T0}, s{T1}")
    v("v_lshlrev_b32 v24, 6, v13", [13], [24]); v(f"v_add_u32 v24, s{T0}, v24", [24], [24])
    v(f"v_mul_u32_u24 v25, {QSTR}, v6", [6], [25], "valu8"); v("v_lshl_add_u32 v25, v7, 4, v25", [7, 25], [25], "valu8")
    r(f"s_lshl_b32 s{T0}, s{S_W}, 7"); v(f"v_add_u32 v25, s{T0}, v25", [25], [25])
    v("v_lshrrev_b32 v26, 2, v6", [6], [26]); v("v_lshlrev_b32 v26, 4, v26", [26], [26]); v("v_sub_u32 v26, 16, v26", [26], [26])
    TS = 196
    for q_, src in enumerate((KS, KS + 1, KS + 2, KS + 3)):
        v(f"v_lshlrev_b32 v{TS+q_}, v26, v{src}", [26, src], [TS + q_]); v(f"v_and_b32 v{TS+q_}, s{S_MASK}, v{TS+q_}", [TS + q_], [TS + q_])
    v(f"v_mul_f32 v{TS}, s42, v{TS}", [TS], [TS]); v(f"v_mul_f32 v{TS+1}, s42, v{TS+1}", [TS + 1], [TS + 1])
    v(f"v_mul_f32_e64 v{TS+2}, -v{TS+2}, v{TS}", [TS, TS + 2], [TS + 2], "valu8"); v(f"v_mul_f32_e64 v{TS+3}, -v{TS+3}, v{TS+1}", [TS + 1, TS + 3], [TS + 3], "valu8")
    for d in range(8):
        v(f"v_cvt_f32_i32 v{KA+d}, v{KA+d}", [KA + d], [KA + d]); v(f"v_cvt_f32_i32 v{KB+d}, v{KB+d}", [KB + d], [KB + d])
    for d in range(8):
        v(f"v_fma_f32 v{KA+d}, v{KA+d}, v{TS}, v{TS+2}", [KA + d, TS, TS + 2], [KA + d], "valu8")
        v(f"v_fma_f32 v{KB+d}, v{KB+d}, v{TS+1}, v{TS+3}", [KB + d, TS + 1, TS + 3], [KB + d], "valu8")
    def rope(pair, cs, out, tmp):
        CL, CH, RL, RH = tmp, tmp + 8, tmp + 16, tmp + 24
        for d in range(8):
            e = d >> 1; sel = "s40" if (d & 1) == 0 else "s41"
            v(f"v_perm_b32 v{CL+d}, v{cs+8+e}, v{cs+e}, {sel}", [cs + 8 + e, cs + e], [CL + d], "valu8")
            v(f"v_perm_b32 v{CH+d}, v{cs+4+e}, v{cs+12+e}, {sel}", [cs + 4 + e, cs + 12 + e], [CH + d], "valu8")
        for d in range(8):
            v(f"v_dot2_f32_bf16 v{RL+d}, v{pair[d]}, v{CL+d}, 0 neg_hi:[0,1,0]", [pair[d], CL + d], [RL + d], "valu8")
            v(f"v_dot2_f32_bf16 v{RH+d}, v{pair[d]}, v{CH+d}, 0", [pair[d], CH + d], [RH + d], "valu8")
        for p in range(2):
            P.append(v_cvtpk(out + 4 * p + 0, RL + 4 * p, RL + 4 * p + 1)); P.append(v_cvtpk(out + 4 * p + 1, RL + 4 * p + 2, RL + 4 * p + 3))
            P.append(v_cvtpk(out + 4 * p + 2, RH + 4 * p, RH + 4 * p + 1)); P.append(v_cvtpk(out + 4 * p + 3, RH + 4 * p + 2, RH + 4 * p + 3))
    KP = 200
    for d in range(8): P.append(v_cvtpk(KP + d, KA + d, KB + d))
    rope([KP + d for d in range(8)], KC, 240, 208)
    kst = [buf_store(240, 4, 22, S_WS, "s46", 0, "sc1"), buf_store(244, 4, 22, S_WS, "s46", 512, "sc1")]
    P += kst
    if st: r("s_memtime s[4:5]")
    P.append(ds_write64(23, VS, 0)); P.append(ds_write64(23, VS + 2, 256))
    SCV = 128
    for jj in range(0, 8, 2):
        P.append(ds_read2_32(SCV + jj, 24, 2 * jj, 2 * jj + 2))
    for jj in range(0, 8, 2):
        P.append(ds_read2_32(SCV + 8 + jj, 24, 64 + 2 * jj, 64 + 2 * jj + 2))
    for e in range(2):
        for jj in range(8):
            x = VD + 8 * e + jj
            v(f"v_cvt_f32_i32 v{x}, v{x}", [x], [x])
    for e in range(2):
        for jj in range(8):
            x = VD + 8 * e + jj
            if e == 0:
                v(f"v_lshlrev_b32 v144, 16, v{SCV+jj}", [SCV + jj], [144]); v(f"v_lshlrev_b32 v145, 16, v{SCV+8+jj}", [SCV + 8 + jj], [145])
            else:
                v(f"v_and_b32 v144, s{S_MASK}, v{SCV+jj}", [SCV + jj], [144]); v(f"v_and_b32 v145, s{S_MASK}, v{SCV+8+jj}", [SCV + 8 + jj], [145])
            v(f"v_sub_f32 v{x}, v{x}, v145", [x, 145], [x]); v(f"v_mul_f32 v{x}, v{x}, v144", [x, 144], [x])
        for q_ in range(4): P.append(v_cvtpk(248 + q_ if e == 0 else 148 + q_, VD + 8 * e + 2 * q_, VD + 8 * e + 2 * q_ + 1))
    vst = [buf_store(248, 4, 1, S_WS, "s47", 0, "sc1"), buf_store(148, 4, 1, S_WS, "s45", 0, "sc1")]
    P += vst
    def qrope(sg):
        b = QD + 24 * sg
        QP = 200
        for d in range(8):
            e = d >> 1; sel = "s40" if (d & 1) == 0 else "s41"
            v(f"v_perm_b32 v{QP+d}, v{b+4+e}, v{b+e}, {sel}", [b + 4 + e, b + e], [QP + d], "valu8")
        out = 152 + 8 * (sg & 1)
        rope([QP + d for d in range(8)], b + 8, out, 208)
        P.append(ds_write128(25, out, sg * QSLOT)); P.append(ds_write128(25, out + 4, sg * QSLOT + 512))
    qrope(0); qrope(1)
    r("s_waitcnt lgkmcnt(0)")
    r(f"s_add_u32 s{S_EK}, s{S_EK}, {EC1:#x}"); r(f"s_add_u32 s{S_EK+1}, s{S_EK+1}, {EC2:#x}"); r(f"s_add_u32 s{S_EM}, s{S_EM}, {EC1:#x}"); r(f"s_add_u32 s{S_EM+1}, s{S_EM+1}, {EC2:#x}")
    v(f"v_mov_b32 v26, s{S_EK}", [], [26]); v(f"v_mov_b32 v27, s{S_EK+1}", [], [27]); v(f"v_mov_b32 v16, s{S_FLG}", [], [16])
    b = barrier(); b.aux = {"need": kst}; P.append(b)
    def flag_store(lbl, off):
        r(f"s_cmp_lg_u32 s{S_W}, 0"); r(f"s_cbranch_scc1 {lbl}", "br")
        r("s_mov_b64 exec, 1")
        r(f"buffer_store_dwordx2 v[26:27], v16, s[{S_WS}:{S_WS+3}], 0 offen offset:{off} sc1", "raw")
        r("s_mov_b64 exec, -1")
        r(f"{lbl}:", "label")
    flag_store("L_kf", 0)
    if st: r("s_memtime s[6:7]")
    qrope(2); qrope(3)
    r("s_waitcnt vmcnt(0)")
    r("s_barrier")
    flag_store("L_vf", 8)
    if st: r("s_memtime s[8:9]")
    r(f"s_lshl_b32 s{T0}, s{S_G}, 4"); r(f"s_lshl_b32 s{T1}, s{S_W}, 2"); r(f"s_add_u32 s{T0}, s{T0}, s{T1}"); r(f"s_lshl_b32 s{T0}, s{T0}, 13")
    if K_OFF: r(f"s_add_u32 s{T0}, s{T0}, {K_OFF}")
    for T in range(4):
        r(f"s_add_u32 s{S_K+2*T}, s{T0}, {T*8192}"); r(f"s_add_u32 s{S_K+2*T+1}, s{T0}, {T*8192+4096}")
    r(f"s_lshl_b32 s{T0}, s{S_G}, 17"); r(f"s_lshl_b32 s{T1}, s{S_W}, 13"); r(f"s_add_u32 s{T0}, s{T0}, s{T1}"); r(f"s_add_u32 s{T0}, s{T0}, {V_OFF}")
    for T in range(4):
        r(f"s_add_u32 s{S_V+2*T}, s{T0}, {T*32768}"); r(f"s_add_u32 s{S_V+2*T+1}, s{T0}, {T*32768+4096}")
    for sg in range(3):
        r(f"s_xor_b32 s{T0}, s{S_J}, {[2,3,1][sg]}"); r(f"s_lshl_b32 s{T1}, s53, 2"); r(f"s_add_u32 s{T0}, s{T0}, s{T1}"); r(f"s_mul_i32 s{T0}, s{T0}, 3"); r(f"s_add_u32 s{T0}, s{T0}, {sg}")
        r(f"s_lshl_b32 s{T0}, s{T0}, 2"); r(f"s_add_u32 s{T0}, s{T0}, s{S_W}"); r(f"s_mul_i32 s{T0}, s{T0}, 3072"); r(f"s_add_u32 s{S_SEND+sg}, s{T0}, {M_OFF}")
    r(f"s_lshl_b32 s{T1}, s53, 2"); r(f"s_add_u32 s{T1}, s{T1}, s{S_J}"); r(f"s_mul_i32 s{T1}, s{T1}, 3")
    for sg in range(3):
        r(f"s_add_u32 s{T0}, s{T1}, {sg}"); r(f"s_lshl_b32 s{T0}, s{T0}, 2"); r(f"s_add_u32 s{T0}, s{T0}, s{S_W}"); r(f"s_mul_i32 s{T0}, s{T0}, 3072"); r(f"s_add_u32 s{S_RECV+sg}, s{T0}, {M_OFF}")
    r(f"s_lshl_b32 s{T0}, s{S_H}, 11"); r(f"s_lshl_b32 s{T1}, s{S_QB}, 7"); r(f"s_add_u32 s{T0}, s{T0}, s{T1}"); r(f"s_lshl_b32 s{T1}, s{S_J}, 5"); r(f"s_add_u32 s{T0}, s{T0}, s{T1}")
    r(f"s_lshl_b32 s{T0}, s{T0}, 8"); r(f"s_lshl_b32 s{T1}, s{S_W}, 6"); r(f"s_add_u32 s{S_OUTO}, s{T0}, s{T1}")
    r(f"s_lshl_b32 s{T0}, s{S_W}, 11"); r(f"s_add_u32 s{T0}, s{T0}, {LDS_P}")
    v(f"v_add_u32 v{PW}, s{T0}, v1", [1], [PW])
    v(f"v_lshlrev_b32 v{LR}, 5, v12", [12], [LR]); v(f"v_add_u32 v{LR}, {LDS_L}, v{LR}", [LR], [LR], "valu8")
    r(f"s_lshl_b32 s{T0}, s{S_W}, 3")
    v(f"v_lshl_add_u32 v{LW}, v13, 2, v{LR}", [13, LR], [LW], "valu8"); v(f"v_add_u32 v{LW}, s{T0}, v{LW}", [LW], [LW])
    v(f"v_lshlrev_b32 v{OUTV}, 8, v12", [12], [OUTV]); v(f"v_lshl_add_u32 v{OUTV}, v13, 4, v{OUTV}", [13, OUTV], [OUTV], "valu8")
    for g in range(3): v(f"v_mov_b32 v{MT+4*g+3}, s{S_EM}", [], [MT + 4 * g + 3])
    main, pre = main_sched(cfg)
    def kvload(kind, T):
        out = []
        for s in range(8):
            base = (S_K if kind == "K" else S_V) + 2 * T + (s >> 2)
            dst = (0 if kind == "K" else 128) + 32 * T + 4 * s
            out.append(buf_load("a", dst, 4, L16, S_WS, f"s{base}", (s & 3) * 1024, cfg.get("kvflags", "sc1")))
        return out
    def poll(lbl, lo):
        r(f"s_cmp_lg_u32 s{S_W}, 0"); r(f"s_cbranch_scc1 {lbl}_done", "br")
        r(f"s_lshl_b32 s{T0}, s{S_G}, 11"); r(f"s_add_u32 s{T0}, s{T0}, {F_OFF}")
        r("v_lshlrev_b32 v16, 7, v0", "valu", ["v0"], ["v16"])
        r("s_mov_b64 exec, 0xffff")
        r(f"{lbl}:", "label")
        r(f"buffer_load_dwordx2 v[26:27], v16, s[{S_WS}:{S_WS+3}], s{T0} offen offset:{lo} sc1")
        r(f"s_add_u32 s{S_SPIN}, s{S_SPIN}, 1"); r(f"s_cmp_gt_u32 s{S_SPIN}, {SPIN}"); r(f"s_cbranch_scc1 {lbl}_out", "br")
        r("s_waitcnt vmcnt(0)", "rawx")
        r(f"v_cmp_ne_u64 vcc, s[{S_EK}:{S_EK+1}], v[26:27]")
        r(f"s_cbranch_vccnz {lbl}", "br")
        r(f"{lbl}_out:", "label")
        r("s_mov_b64 exec, -1")
        r(f"{lbl}_done:", "label")
    poll("L_pk", 0)
    r("s_waitcnt lgkmcnt(0)")
    r("s_barrier")
    if st: r("s_memtime s[10:11]")
    preK = [c for c in pre if c[1] == "K"]; preV = [c for c in pre if c[1] == "V"]
    P += kvload("K", preK[0][2])
    for s in range(8): P.append(ds_read128(QREG[0] + 4 * s, L16, LDS_Q + s * QSTR))
    poll("L_pv", 8)
    r("s_barrier")
    if st: r("s_memtime s[12:13]")
    for c in pre:
        if c is not preK[0]: P += kvload(c[1], c[2])
    r(f"s_or_b32 s{T0}, s{S_QB}, s{S_W}"); r(f"s_cmp_lg_u32 s{T0}, 0"); r("s_cbranch_scc1 L_noxk", "br")
    r(f"v_mov_b32 v26, s{S_EK}", "valu", [], ["v26"]); r(f"v_mov_b32 v27, s{S_EK+1}", "valu", [], ["v27"]); r(f"v_mov_b32 v16, s{S_XKA}", "valu", [], ["v16"])
    r("s_mov_b64 exec, 1")
    xk = I(f"buffer_store_dwordx2 v[26:27], v16, s[{S_WS}:{S_WS+3}], 0 offen sc1", "raw")
    P.append(xk)
    r("s_mov_b64 exec, -1")
    r("s_waitcnt vmcnt(0)", "rawx")
    r("L_noxk:", "label")
    T_ = []
    def t(x, k="raw", rd=(), wr=()): T_.append(I(x, k, rd, wr))
    ns = len(st) if st else 0
    t(f"s_mov_b64 s[{S_BAD}:{S_BAD+1}], 0")
    for sg in range(3):
        for g in range(3):
            T_.append(I(f"v_cmp_ne_u32 vcc, s{S_EM}, v{RCV[sg]+4*g+3}", "valu", [f"v{RCV[sg]+4*g+3}"], ["vcc"]))
            t(f"s_or_b64 s[{S_BAD}:{S_BAD+1}], s[{S_BAD}:{S_BAD+1}], vcc")
    t(f"s_cmp_lg_u64 s[{S_BAD}:{S_BAD+1}], 0")
    t("s_cbranch_scc1 RELOAD", "br")
    t("RBACK:", "label")
    if st: t(f"s_memtime s[{14+2*ns}:{15+2*ns}]")
    O = OREG[3]
    for sg in range(3): T_.append(v_add(LREG + 3, LREG + 3, RCV[sg] + 10))
    T_.append(v_rcp(LT, LREG + 3))
    slotreg = [0, 1, 2, 4, 5, 6, 8, 9]
    for k in range(8):
        for sg in range(3):
            src = RCV[sg] + slotreg[k]
            T_.append(I(f"v_lshlrev_b32 v{LT+2}, 16, v{src}", "valu", [f"v{src}"], [f"v{LT+2}"]))
            T_.append(I(f"v_and_b32 v{LT+3}, s{S_MASK}, v{src}", "valu", [f"v{src}"], [f"v{LT+3}"]))
            T_.append(v_add(O + 2 * k, O + 2 * k, LT + 2))
            T_.append(v_add(O + 2 * k + 1, O + 2 * k + 1, LT + 3))
    for k in range(16): T_.append(v_mul(O + k, O + k, LT))
    D = SB[0]
    for k in range(8): T_.append(v_cvtpk(D + k, O + 2 * k, O + 2 * k + 1))
    for Rr in (0, 2):
        for dd in range(2):
            T_.append(I(f"v_permlane32_swap_b32 v{D+2*Rr+dd}, v{D+2*Rr+2+dd}", "perm", [f"v{D+2*Rr+dd}", f"v{D+2*Rr+2+dd}"], [f"v{D+2*Rr+dd}", f"v{D+2*Rr+2+dd}"]))
    for Rr in (0, 2):
        T_.append(buf_store(D + 2 * Rr, 4, OUTV, S_OUT, f"s{S_OUTO}", Rr * 16, cfg.get("outflags", "")))
    if st:
        t(f"s_memtime s[{16+2*ns}:{17+2*ns}]")
        t("s_waitcnt vmcnt(0)")
        t(f"s_memtime s[{18+2*ns}:{19+2*ns}]"); t("s_memrealtime s[30:31]")
        t("s_waitcnt lgkmcnt(0)")
        t(f"s_lshl_b32 s{T0}, s2, 2"); t(f"s_add_u32 s{T0}, s{T0}, s{S_W}"); t(f"s_lshl_b32 s{T0}, s{T0}, 7"); t(f"s_add_u32 s{T0}, s{T0}, {ST_OFF}")
        t(f"v_mov_b32 v12, s{T0}", "valu", [], ["v12"])
        nst = 5 + ns + 3
        t("v_mov_b32 v100, s98", "valu", [], [])
        t(f"s_sub_u32 s{T0}, s100, s96"); t(f"v_mov_b32 v101, s{T0}", "valu", [], [])
        for k in range(nst):
            t(f"s_sub_u32 s{T0}, s{4+2*k}, s96"); t(f"v_mov_b32 v{102+k}, s{T0}", "valu", [], [])
        t(f"v_mov_b32 v130, s{S_SPIN}", "valu", [], []); t("v_mov_b32 v131, s30", "valu", [], [])
        t("s_mov_b64 exec, 1")
        for q in range(8): t(f"buffer_store_dwordx4 v[{100+4*q}:{103+4*q}], v12, s[{S_WS}:{S_WS+3}], 0 offen offset:{16*q}")
        t("s_mov_b64 exec, -1")
    if cfg.get("mstamps"):
        ms = cfg["mstamps"]
        t("s_waitcnt vmcnt(0) lgkmcnt(0)")
        t(f"s_lshl_b32 s{T0}, s2, 2"); t(f"s_add_u32 s{T0}, s{T0}, s{S_W}"); t(f"s_lshl_b32 s{T0}, s{T0}, 7"); t(f"s_add_u32 s{T0}, s{T0}, {ST_OFF}")
        t(f"v_mov_b32 v12, s{T0}", "valu", [], ["v12"])
        for k in range(32):
            if k < len(ms):
                t(f"s_sub_u32 s{T0}, s{MPAIRS[k]}, s{MPAIRS[0]}"); t(f"v_mov_b32 v{100+k}, s{T0}", "valu", [], [])
            else: t(f"v_mov_b32 v{100+k}, 0", "valu", [], [])
        t("s_mov_b64 exec, 1")
        for q in range(8): t(f"buffer_store_dwordx4 v[{100+4*q}:{103+4*q}], v12, s[{S_WS}:{S_WS+3}], 0 offen offset:{16*q}")
        t("s_mov_b64 exec, -1")
    t(f"s_or_b32 s{T0}, s{S_J}, s{S_W}"); t(f"s_cmp_lg_u32 s{T0}, 0"); t("s_cbranch_scc1 A_end", "br")
    t(f"v_mov_b32 v6, s{S_EM}", "valu", [], ["v6"]); t(f"v_mov_b32 v7, s{S_EM+1}", "valu", [], ["v7"]); t(f"v_mov_b32 v12, s{S_XMA}", "valu", [], ["v12"])
    t("s_mov_b64 exec, 1")
    t(f"buffer_store_dwordx2 v[6:7], v12, s[{S_WS}:{S_WS+3}], 0 offen sc1")
    t("A_end:", "label"); t("s_endpgm")
    X = []
    def x(s_, k="raw", rd=(), wr=()): X.append(I(s_, k, rd, wr))
    x("RELOAD:", "label")
    for sg in range(3):
        for g in range(3): X.append(buf_load("v", RCV[sg] + 4 * g, 4, L16, S_WS, f"s{S_RECV+sg}", g * 1024, "sc1"))
    x("s_waitcnt vmcnt(0)")
    x(f"s_mov_b64 s[{S_BAD}:{S_BAD+1}], 0")
    for sg in range(3):
        for g in range(3):
            x(f"v_cmp_ne_u32 vcc, s{S_EM}, v{RCV[sg]+4*g+3}")
            x(f"s_or_b64 s[{S_BAD}:{S_BAD+1}], s[{S_BAD}:{S_BAD+1}], vcc")
    x(f"s_add_u32 s{S_SPIN}, s{S_SPIN}, 1"); x(f"s_cmp_gt_u32 s{S_SPIN}, {SPIN}"); x("s_cbranch_scc1 RBACK", "br")
    x(f"s_cmp_lg_u64 s[{S_BAD}:{S_BAD+1}], 0")
    x("s_cbranch_scc1 RELOAD", "br")
    x("s_branch RBACK", "br")
    for sl in range(4):
        x(f"SLOW_{sl}:", "label"); x("s_endpgm")
    lin = insert_waits(P + main + [nop(11)] + T_)
    lin, nfix = fix_hazards(lin)
    print("hazard nops inserted:", nfix, " code bytes ~", sum(nbytes(i) for i in lin), "instrs", len(lin))
    hdr = HEADER_COMMENT + f"; @launch grid=(256,1,1) block=(256,1,1) lds={LDS_SIZE}\n"
    hdr += '.amdgcn_target "amdgcn-amd-amdhsa--gfx950"\n.text\n'
    txt = hdr + f".globl {MAIN}\n.p2align 8\n.type {MAIN},@function\n{MAIN}:\nKSTART:\n" + emit(lin) + emit(X)
    txt += "PADSTART:\n.fill (16384 - (PADSTART - KSTART)) / 4, 4, 0xbf810000\n" if False else ""
    txt += ".p2align 10\n.fill 4096, 4, 0xbf810000\n"
    txt += '.section .rodata,"a"\n' + kd(MAIN, 512, 256)
    open(fname, "w").write(txt)

if __name__ == "__main__":
    cfg = {}
    build(cfg, "v3.s")
    cfg["stamps"] = [0, 64, 128, 192, 255]
    build(cfg, "v3_st.s")
```

```python
import re

def R(pref, base, n=1):
    return [f"{pref}{base+i}" for i in range(n)]
def rs(pref, base, n=1):
    return f"{pref}{base}" if n == 1 else f"{pref}[{base}:{base+n-1}]"

class I:
    __slots__ = ("t", "k", "rd", "wr", "cost", "rel", "dl", "deps", "name", "pos", "gap", "vm", "lg", "nbytes", "prio", "aux", "canon")
    def __init__(s, t, k, rd=(), wr=(), cost=None, name=None):
        s.t = t; s.k = k; s.rd = list(rd); s.wr = list(wr)
        s.cost = cost if cost is not None else COST[k]
        s.rel = 0; s.dl = 10**9; s.deps = []; s.name = name; s.pos = None; s.gap = None
        s.vm = k in ("vld", "vst", "dma"); s.lg = k in ("dsr", "dsw")
        s.prio = 0; s.aux = None; s.canon = None
    def __repr__(s): return f"<{s.t}>"

COST = {"mfma": 8, "mfma16": 8, "valu": 4, "valu8": 4.6, "trans": 8, "dsr": 4, "dsw": 20, "dsw32": 8, "vld": 4, "vst": 22, "dma": 4,
        "salu": 4, "wait": 4, "bar": 4, "perm": 8, "br": 4, "label": 0, "nop": 4, "raw": 4, "rawx": 4}

def mfma32(d, a, b, c, apref="v", bpref="v"):
    cs = "0" if c is None else rs("v", c, 16)
    rd = R(apref, a, 4) + R(bpref, b, 4) + ([] if c is None else R("v", c, 16))
    i = I(f"v_mfma_f32_32x32x16_bf16 {rs('v', d, 16)}, {rs(apref, a, 4)}, {rs(bpref, b, 4)}, {cs}", "mfma", rd, R("v", d, 16))
    i.aux = {"c": [] if c is None else R("v", c, 16), "ab": R(apref, a, 4) + R(bpref, b, 4)}
    return i
def valu(t, rd, wr, k="valu"): return I(t, k, rd, wr)
def v_exp(d, s): return I(f"v_exp_f32 v{d}, v{s}", "trans", [f"v{s}"], [f"v{d}"])
def v_rcp(d, s): return I(f"v_rcp_f32 v{d}, v{s}", "trans", [f"v{s}"], [f"v{d}"])
def v_add(d, a, b): return I(f"v_add_f32 v{d}, v{a}, v{b}", "valu", [f"v{a}", f"v{b}"], [f"v{d}"])
def v_mul(d, a, b): return I(f"v_mul_f32 v{d}, v{a}, v{b}", "valu", [f"v{a}", f"v{b}"], [f"v{d}"])
def v_cvtpk(d, a, b): return I(f"v_cvt_pk_bf16_f32 v{d}, v{a}, v{b}", "valu8", [f"v{a}", f"v{b}"], [f"v{d}"])
def v_mov(d, src):
    rd = [src] if re.match(r"^[vs]\d+$", src) else []
    k = "valu8" if (src.startswith("0x") or (src.lstrip("-").isdigit() and not -16 <= int(src) <= 64)) else "valu"
    return I(f"v_mov_b32 v{d}, {src}", k, rd, [f"v{d}"])
def ds_read128(d, addr, off): return I(f"ds_read_b128 {rs('v', d, 4)}, v{addr} offset:{off}", "dsr", [f"v{addr}"], R("v", d, 4))
def ds_write128(addr, s, off): return I(f"ds_write_b128 v{addr}, {rs('v', s, 4)} offset:{off}", "dsw", [f"v{addr}"] + R("v", s, 4), [])
def ds_write32(addr, s, off):
    i = I(f"ds_write_b32 v{addr}, v{s} offset:{off}", "dsw", [f"v{addr}", f"v{s}"], [], cost=8); return i
def buf_load(dpref, d, n, voff, srd, soff, off, flags=""):
    nm = {1: "dword", 2: "dwordx2", 4: "dwordx4"}[n]
    rd = [f"v{voff}"] + R("s", srd, 4) + ([soff] if soff.startswith("s") else [])
    o = f" offset:{off}" if off else ""
    return I(f"buffer_load_{nm} {rs(dpref, d, n)}, v{voff}, {rs('s', srd, 4)}, {soff} offen{o} {flags}".rstrip(), "vld", rd, R(dpref, d, n))
def buf_store(s, n, voff, srd, soff, off, flags=""):
    nm = {1: "dword", 2: "dwordx2", 4: "dwordx4"}[n]
    rd = [f"v{voff}"] + R("s", srd, 4) + ([soff] if soff.startswith("s") else []) + R("v", s, n)
    o = f" offset:{off}" if off else ""
    i = I(f"buffer_store_{nm} {rs('v', s, n)}, v{voff}, {rs('s', srd, 4)}, {soff} offen{o} {flags}".rstrip(), "vst", rd, [])
    i.aux = {"data": R("v", s, n)}
    if n < 4: i.cost = 8 + 4 * n
    return i
def salu(t, rd, wr): return I(t, "salu", rd, wr)
def barrier(): return I("s_barrier", "bar")
def label(n): return I(f"{n}:", "label")
def raw(t, k="raw", rd=(), wr=()): return I(t, k, rd, wr)
def nop(n):
    i = I(f"s_nop {n}", "nop"); i.aux = n; return i

def nbytes(i):
    t = i.t
    if i.k == "label": return 0
    if i.k in ("mfma", "mfma16", "dsr", "dsw", "vld", "vst", "dma", "valu8", "perm"):
        if t.startswith("v_permlane32_swap") : return 4
        return 8
    if i.k in ("salu",):
        return 8 if re.search(r"0x[0-9a-f]{3,}|\b\d{3,}\b", t) else 4
    return 4

def states(i):
    if i.k == "label": return 0
    if i.k == "nop": return i.aux + 1
    return 1

def insert_waits(lin, hoist=True):
    out = []
    vmq = []
    lgq = []
    def need_for(i):
        nv = None; nl = None
        regs = set(i.rd) | set(i.wr)
        extra = (i.aux or {}).get("need", []) if isinstance(i.aux, dict) else []
        for q, which in ((vmq, "v"), (lgq, "l")):
            last = -1
            for idx, op in enumerate(q):
                hit = False
                if op in extra: hit = True
                elif op.k in ("vld", "dsr") and (set(op.wr) & regs): hit = True
                elif op.k == "vst" and False: hit = True
                if hit: last = idx
            if last >= 0:
                n = len(q) - 1 - last
                if which == "v": nv = n
                else: nl = n
        return nv, nl
    def apply(nv, nl):
        nonlocal vmq, lgq
        if nv is not None: vmq = vmq[len(vmq) - nv:] if nv > 0 else []
        if nl is not None: lgq = lgq[len(lgq) - nl:] if nl > 0 else []
    def mk(nv, nl):
        parts = []
        if nv is not None: parts.append(f"vmcnt({min(nv, 63)})")
        if nl is not None: parts.append(f"lgkmcnt({min(nl, 15)})")
        w = I("s_waitcnt " + " ".join(parts), "wait"); w.aux = (nv, nl)
        return w
    n = len(lin)
    idx = 0
    while idx < n:
        i = lin[idx]
        if i.k == "wait" and isinstance(i.aux, tuple):
            apply(*i.aux); out.append(i); idx += 1; continue
        if i.k == "raw" and i.t.startswith("s_waitcnt"):
            m = re.search(r"vmcnt\((\d+)\)", i.t); nv = int(m.group(1)) if m else None
            m = re.search(r"lgkmcnt\((\d+)\)", i.t); nl = int(m.group(1)) if m else None
            if nv is not None and nv >= len(vmq): nv = None
            if nl is not None and nl >= len(lgq): nl = None
            apply(nv, nl); out.append(i); idx += 1; continue
        nv, nl = need_for(i)
        if nv is not None or nl is not None:
            out.append(mk(nv, nl)); apply(nv, nl)
        out.append(i)
        if i.vm:
            vmq.append(i)
            assert len(vmq) <= 63, f"too many vm outstanding at {i}"
        if i.lg:
            lgq.append(i)
        if i.k in ("mfma", "mfma16") and hoist:
            j = idx + 1; hv = None; hl = None
            snapshot_v = list(vmq); snapshot_l = list(lgq)
            while j < n:
                c = lin[j]
                if c.k in ("label", "br") : break
                v, l = need_for(c)
                if v is not None: hv = v if hv is None else min(hv, v)
                if l is not None: hl = l if hl is None else min(hl, l)
                if c.k in ("mfma", "mfma16"): break
                j += 1
            if hv is not None or hl is not None:
                out.append(mk(hv, hl)); apply(hv, hl)
        idx += 1
    return out

def fix_hazards(lin, fix=True):
    out = []
    times = []
    nfix = 0
    state = {"t": 0, "mf_free": 0}
    def push(x):
        t = state["t"]
        if x.k in ("mfma", "mfma16"):
            t = max(t, state["mf_free"])
            state["mf_free"] = t + (8 if x.k == "mfma" else 4)
        out.append(x); times.append(t)
        state["t"] = t + states(x)
    def dist_since(pred, limit=24):
        now = state["t"]
        for k in range(len(out) - 1, -1, -1):
            d = now - times[k] - 1
            if d >= limit: return None
            if pred(out[k]): return d
        return None
    for i in lin:
        need = 0
        rd = set(i.rd); wr = set(i.wr)
        isvalu = i.k in ("valu", "valu8", "trans", "perm")
        ismf = i.k in ("mfma", "mfma16")
        ismem = i.k in ("dsr", "dsw", "vld", "vst", "dma")
        def chk(pred, ws):
            nonlocal need
            d = dist_since(pred)
            if d is not None and d < ws: need = max(need, ws - d)
        if isvalu or ismem:
            touched = rd | wr
            chk(lambda x: x.k == "mfma" and set(x.wr) & touched, 12)
            chk(lambda x: x.k == "mfma16" and set(x.wr) & touched, 8)
        if isvalu:
            chk(lambda x: x.k == "mfma" and set(x.aux["c"]) & wr, 7)
            chk(lambda x: x.k == "mfma16" and set(x.aux["c"]) & wr, 3)
            if i.k != "trans":
                chk(lambda x: x.k == "trans" and set(x.wr) & rd, 1)
            chk(lambda x: x.k == "vst" and set(x.aux["data"]) & wr, 2)
            srd_ = {r for r in rd if r.startswith("s") or r == "vcc"}
            if srd_: chk(lambda x: x.k in ("valu", "valu8", "perm") and set(x.wr) & srd_, 2)
            if i.k == "perm" or "v_readfirstlane" in i.t or "v_readlane" in i.t:
                ws = 2 if i.k == "perm" else 1
                chk(lambda x: x.k in ("valu", "valu8", "trans", "perm") and set(x.wr) & rd, ws)
            if "dpp" in i.t: chk(lambda x: x.k in ("valu", "valu8", "trans", "perm") and set(x.wr) & rd, 2)
        if ismf:
            chk(lambda x: x.k in ("valu", "valu8", "trans", "perm") and set(x.wr) & rd, 2)
            ab = set(i.aux["ab"]); c = set(i.aux["c"])
            chk(lambda x: x.k == "mfma" and set(x.wr) & ab, 12)
            chk(lambda x: x.k == "mfma16" and set(x.wr) & ab, 8)
            def ovl(x):
                if x.k not in ("mfma", "mfma16"): return False
                w = set(x.wr)
                return bool(w & c) and not (w == c and x.k == i.k)
            chk(ovl, 10)
            def waw(x):
                if x.k not in ("mfma", "mfma16"): return False
                w = set(x.wr)
                return bool(w & wr) and not (w == c)
            chk(waw, 10)
        if i.k in ("vld", "vst", "dma"):
            srd_ = {r for r in rd if r.startswith("s")}
            chk(lambda x: x.k in ("valu", "valu8", "perm") and set(x.wr) & srd_, 5)
            if i.k == "dma": chk(lambda x: "m0" in x.wr, 1)
        if need > 0:
            nfix += 1
            k = need
            while k > 0:
                n = min(k, 16); push(nop(n - 1)); k -= n
        push(i)
    return out, nfix

def emit(lin):
    L = []
    for i in lin:
        for ln in i.t.split("\n"):
            L.append(ln if ln.endswith(":") else "    " + ln)
    return "\n".join(L) + "\n"

def schedule(mfmas, ops, cap=24.0, tail_gaps=64, verbose=False, hspace=2):
    pend = list(ops)
    for o in pend: o.gap = None
    lin = []
    G = len(mfmas)
    over = []
    order = {"salu": 0, "wait": 0, "bar": 3, "dsr": 1, "vld": 1, "dma": 1, "dsw": 2, "vst": 2, "trans": 4, "valu": 5, "valu8": 5, "perm": 5, "br": 6, "label": 7, "raw": 5}
    last_heavy = [-100]
    fixed_light = set(o.rel for o in pend if o.k == "dsr" and o.rel == o.dl)
    g = 0
    while g < G or pend:
        if g < G: lin.append(mfmas[g]); mfmas[g].gap = g
        rem = cap if g < G else 10**6
        chosen = []
        freeslot = True
        progress = True
        while progress:
            progress = False
            cands = [o for o in pend if o.rel <= g and all(d.gap is not None and d.gap + mg <= g for d, mg in o.deps)]
            cands.sort(key=lambda o: (o.dl, o.prio))
            for o in cands:
                c = o.cost
                isfree = o.k == "salu" and freeslot
                heavy = lambda x: x.k in ("dsw", "vst") and x.cost >= 12
                light = lambda x: x.k in ("dsr", "vld", "dma")
                clash = (heavy(o) and any(heavy(x) or light(x) for x in chosen)) or (light(o) and any(heavy(x) for x in chosen)) \
                        or (heavy(o) and g in fixed_light) or (heavy(o) and g - last_heavy[0] < hspace)
                hard = o.aux.get("hard", o.dl + 1) if isinstance(o.aux, dict) else o.dl + 1
                if clash and g < hard and not (light(o) and o.dl <= g): continue
                if isfree or c <= rem + 0.01 or o.dl <= g:
                    if isfree: freeslot = False
                    else: rem -= c
                    o.gap = g; chosen.append(o); pend.remove(o); progress = True
                    if heavy(o): last_heavy[0] = g
                    break
        inset = set(id(o) for o in chosen)
        def samegapdep(o): return any(id(d) in inset for d, mg in o.deps)
        front = [o for o in chosen if o.k in ("salu", "dsr", "vld", "dma", "dsw", "vst") and not samegapdep(o)]
        front.sort(key=lambda o: order[o.k])
        rest = [o for o in chosen if o not in front]
        tr = [o for o in rest if o.k == "trans" and not samegapdep(o)]
        rest = tr + [o for o in rest if o not in tr]
        lin += front + rest
        if rem < -0.01 and g < G: over.append((g, -rem))
        g += 1
        if g > G + tail_gaps and pend:
            raise RuntimeError("unschedulable ops: " + str(pend[:5]) + str([(d.gap, mg, d) for d, mg in pend[0].deps]))
    if verbose:
        tot = sum(x for _, x in over)
        print(f"schedule: {G} mfma gaps, overflow cycles {tot:.0f} in {len(over)} gaps: {[(g, int(x)) for g, x in over]}")
    return lin


def verify_dataflow(sched):
    ops = [o for o in sched if o.canon is not None]
    canon = sorted(ops, key=lambda o: o.canon)
    def writers(seq):
        last = {}
        res = {}
        for o in seq:
            res[id(o)] = {r: last.get(r) for r in o.rd}
            for w in o.wr: last[w] = o
        return res, last
    a, la = writers(canon); b, lb = writers(ops)
    bad = 0
    for o in ops:
        for r in o.rd:
            if a[id(o)][r] is not b[id(o)][r]:
                bad += 1
                if bad < 20: print(f"DATAFLOW MISMATCH: {o.t} reads {r}: canon writer {a[id(o)][r]} vs sched writer {b[id(o)][r]}  (gap {o.gap})")
    for r in la:
        if la[r] is not lb[r]:
            bad += 1
            if bad < 20: print(f"LIVEOUT MISMATCH {r}: {la[r]} vs {lb[r]}")
    assert bad == 0, f"{bad} dataflow mismatches"
    return True

def g_load(dpref, d, n, voff, sbase, off=0, flags=""):
    nm = {1: "dword", 2: "dwordx2", 4: "dwordx4"}[n]
    o = f" offset:{off}" if off else ""
    return I(f"global_load_{nm} {rs(dpref, d, n)}, v{voff}, s[{sbase}:{sbase+1}]{o} {flags}".rstrip(), "vld", [f"v{voff}", f"s{sbase}", f"s{sbase+1}"], R(dpref, d, n))
def ds_write64(addr, s, off):
    return I(f"ds_write_b64 v{addr}, {rs('v', s, 2)} offset:{off}", "dsw", [f"v{addr}"] + R("v", s, 2), [], cost=12)
def ds_read2_32(d, addr, o0, o1):
    return I(f"ds_read2_b32 {rs('v', d, 2)}, v{addr} offset0:{o0} offset1:{o1}", "dsr", [f"v{addr}"], R("v", d, 2))
def V(t, rd, wr, k="valu"):
    f = lambda L: [x if isinstance(x, str) else f"v{x}" for x in L]
    return I(t, k, f(rd), f(wr))
```

```python
import sys, math, struct
import numpy as np
from asmlib import *
from ir import *
import gen3
from gen3 import *

def build(cfg, fname):
    st = cfg.get("stamps")
    mode = cfg.get("cs", "R")
    P = []
    def r(t, k="raw", rd=(), wr=()): P.append(I(t, k, rd, wr)); return P[-1]
    def v(t, rd, wr, k="valu"): P.append(V(t, rd, wr, k)); return P[-1]
    if st: r("s_memtime s[96:97]"); r("s_memrealtime s[98:99]")
    r("s_cmp_ge_u32 s2, 256"); r("s_cbranch_scc1 A_end")
    r("s_load_dwordx16 s[4:19], s[0:1], 0"); r("s_load_dwordx8 s[20:27], s[0:1], 64"); r("s_load_dwordx2 s[28:29], s[0:1], 104")
    v("v_lshrrev_b32 v6, 6, v0", [0], [6]); v("v_and_b32 v0, 63, v0", [0], [0])
    v(f"v_readfirstlane_b32 s{S_W}, v6", [6], [f"s{S_W}"])
    r(f"s_getpc_b64 s[{S_T2}:{S_T2+1}]")
    r("L_pc:", "label")
    r(f"s_lshr_b32 s47, s2, 3"); r("s_lshl_b32 s47, s47, 2"); r(f"s_add_u32 s47, s47, s{S_W}"); r("s_and_b32 s47, s47, 15"); r("s_lshl_b32 s47, s47, 10")
    r(f"s_sub_u32 s{S_T2}, s{S_T2}, L_pc-KSTART"); r(f"s_subb_u32 s{S_T2+1}, s{S_T2+1}, 0")
    v("v_lshlrev_b32 v1, 4, v0", [0], [1])
    v("v_add_u32 v16, s47, v1", [1], [16])
    P.append(g_load("v", 252, 4, 16, S_T2))
    r(f"s_and_b32 s{T0}, s2, 7"); r(f"s_lshr_b32 s{T1}, s2, 3")
    r(f"s_lshr_b32 s{S_H}, s{T0}, 1")
    r(f"s_and_b32 s{S_J}, s{T0}, 1"); r(f"s_lshl_b32 s{S_J}, s{S_J}, 1"); r(f"s_and_b32 s{T2}, s{T1}, 1"); r(f"s_add_u32 s{S_J}, s{S_J}, s{T2}")
    r(f"s_lshr_b32 s{S_QB}, s{T1}, 1")
    v("v_and_b32 v6, 7, v0", [0], [6]); v("v_lshrrev_b32 v7, 3, v0", [0], [7])
    v("v_and_b32 v8, 4, v7", [7], [8]); v("v_add_u32 v8, v7, v8", [7, 8], [8])
    v("v_lshlrev_b32 v9, 5, v6", [6], [9]); v("v_lshl_add_u32 v9, v8, 9, v9", [8, 9], [9], "valu8")
    r(f"s_lshl_b32 s{T0}, s{S_J}, 9"); r(f"s_lshl_b32 s{T1}, s{S_QB}, 5"); r(f"s_add_u32 s{T0}, s{T0}, s{T1}")
    r(f"s_and_b32 s{T1}, s{S_W}, 1"); r(f"s_lshl_b32 s{T1}, s{T1}, 2"); r(f"s_lshr_b32 s{T2}, s{S_W}, 1"); r(f"s_lshl_b32 s{T2}, s{T2}, 4")
    r(f"s_add_u32 s{T1}, s{T1}, s{T2}"); r(f"s_add_u32 s{T1}, s{T1}, s{T0}")
    r(f"s_lshl_b32 s{T2}, s{S_H}, 11"); r(f"s_add_u32 s{T3}, s{T2}, s{T1}")
    r(f"s_lshl_b32 s40, s{T3}, 9"); r(f"s_lshl_b32 s42, s{T3}, 3")
    if mode != "C":
        r(f"s_lshl_b32 s41, s{T1}, 8")
        v("v_lshrrev_b32 v10, 1, v9", [9], [10]); v("v_add_u32 v10, s41, v10", [10], [10])
    else:
        v(f"v_add_u32 v10, s{T1}, v8", [8], [10])
    v("v_add_u32 v9, s40, v9", [9], [9])
    v("v_lshlrev_b32 v11, 3, v8", [8], [11]); v("v_add_u32 v11, s42, v11", [11], [11])
    r("s_waitcnt lgkmcnt(0)")
    KA, KB, KC, KS = 128, 136, 144, 160
    kl = []
    for (dst, off) in ((KA, 0), (KA + 4, 16), (KB, 256), (KB + 4, 272)): kl.append(g_load("v", dst, 4, 9, 6, off))
    kl += [g_load("v", KS, 2, 11, 8), g_load("v", KS + 2, 2, 11, 10)]
    if mode == "R":
        kl += [g_load("v", KC, 4, 10, 22, 0), g_load("v", KC + 4, 4, 10, 22, 128), g_load("v", KC + 8, 4, 10, 24, 0), g_load("v", KC + 12, 4, 10, 24, 128)]
    elif mode == "H":
        kl += [g_load("v", KC, 4, 10, 22, 0), g_load("v", KC + 8, 4, 10, 24, 0)]
    P += kl
    v("v_and_b32 v12, 31, v0", [0], [12]); v("v_lshrrev_b32 v13, 5, v0", [0], [13])
    r(f"s_lshr_b32 s43, s{S_W}, 1"); r(f"s_and_b32 s44, s{S_W}, 1")
    r(f"s_add_u32 s{T2}, s{T2}, s{T0}")
    r(f"s_lshl_b32 s45, s43, 4"); r(f"s_add_u32 s45, s45, s{T2}"); r("s_lshl_b32 s45, s45, 9"); r("s_lshl_b32 s46, s44, 8"); r("s_add_u32 s45, s45, s46")
    v("v_lshrrev_b32 v14, 4, v0", [0], [14]); v("v_lshlrev_b32 v14, 9, v14", [14], [14]); v("v_and_b32 v15, 15, v0", [0], [15])
    v("v_lshl_add_u32 v14, v15, 4, v14", [14, 15], [14], "valu8"); v("v_add_u32 v14, s45, v14", [14], [14])
    r(f"s_lshl_b32 s46, s{T2}, 3")
    v("v_lshlrev_b32 v15, 3, v12", [12], [15]); v("v_add_u32 v15, s46, v15", [15], [15])
    r(f"s_lshl_b32 s46, s{S_W}, 12"); r(f"s_add_u32 s46, s46, {LDS_P}")
    VD, VS = 168, 184
    v("v_lshlrev_b32 v17, 4, v6", [6], [17]); v("v_lshl_add_u32 v17, v7, 8, v17", [7, 17], [17], "valu8")
    r(f"s_lshl_b32 s{T0}, s{S_QB}, 7"); r(f"s_lshl_b32 s{T1}, s{S_W}, 3"); r(f"s_add_u32 s{T0}, s{T0}, s{T1}")
    r(f"s_lshl_b32 s{T3}, s{T0}, 8")
    r(f"s_lshl_b32 s{T1}, s{S_H}, 19"); r(f"s_add_u32 s4, s4, s{T1}"); r("s_addc_u32 s5, s5, 0")
    QD = 32
    QA_ = [18, 19, 20, 28]
    def qaddr(sg):
        r(f"s_xor_b32 s{T1}, s{S_J}, {[2,3,1,0][sg]}"); r(f"s_lshl_b32 s{T1}, s{T1}, 13"); r(f"s_add_u32 s{T1}, s{T1}, s{T3}")
        v(f"v_add_u32 v{QA_[sg]}, s{T1}, v17", [17], [QA_[sg]])
    def qloads(sg):
        b = QD + 24 * sg
        a_ = QA_[sg]
        L = [g_load("v", b, 4, a_, 4, 0), g_load("v", b + 4, 4, a_, 4, 128)]
        if mode == "R":
            L += [g_load("v", b + 8, 4, a_, 18, 0), g_load("v", b + 12, 4, a_, 18, 128), g_load("v", b + 16, 4, a_, 20, 0), g_load("v", b + 20, 4, a_, 20, 128)]
        elif mode == "H":
            L += [g_load("v", b + 8, 4, a_, 18, 0), g_load("v", b + 16, 4, a_, 20, 0)]
        P.extend(L)
    vdma = []
    for i in range(4):
        r(f"s_add_u32 m0, s46, {i*1024}", "salu", [], ["m0"])
        if i: v("v_add_u32 v14, 2048, v14", [14], [14], "valu8")
        else: r("s_nop 0")
        vdma.append(I("global_load_lds_dwordx4 v14, s[12:13]", "dma", ["v14"], [])); P.append(vdma[-1])
    P += [g_load("v", VS, 2, 15, 14), g_load("v", VS + 2, 2, 15, 16)]
    for sg in range(4): qaddr(sg)
    early_q = cfg.get("early_q", {"R": 0, "H": 0, "C": 0}[mode])
    for sg in range(early_q): qloads(sg)
    r(f"s_mov_b32 s{S_WS}, s28"); r(f"s_and_b32 s{S_WS+1}, s29, 0xffff"); r(f"s_mov_b32 s{S_WS+2}, {WS_USE}"); r(f"s_mov_b32 s{S_WS+3}, 0x20000")
    r(f"s_mov_b32 s{S_OUT}, s26"); r(f"s_and_b32 s{S_OUT+1}, s27, 0xffff"); r(f"s_mov_b32 s{S_OUT+2}, {2<<20}"); r(f"s_mov_b32 s{S_OUT+3}, 0x20000")
    r(f"s_lshl_b32 s{S_G}, s{S_H}, 2"); r(f"s_add_u32 s{S_G}, s{S_G}, s{S_J}")
    r(f"s_lshl_b32 s{S_XKA}, s{S_G}, 7"); r(f"s_add_u32 s{S_XKA}, s{S_XKA}, {XK_OFF}")
    r(f"s_lshl_b32 s53, s{S_H}, 4"); r(f"s_add_u32 s53, s53, s{S_QB}")
    r(f"s_lshl_b32 s{S_XMA}, s53, 7"); r(f"s_add_u32 s{S_XMA}, s{S_XMA}, {XM_OFF}")
    r(f"s_load_dwordx2 s[{S_EK}:{S_EK+1}], s[28:29], s{S_XKA}"); r(f"s_load_dwordx2 s[{S_EM}:{S_EM+1}], s[28:29], s{S_XMA}")
    if st: r("s_memtime s[100:101]")
    r(f"s_mov_b32 s{S_MASK}, 0xffff0000"); r("s_mov_b32 s40, 0x05040100"); r("s_mov_b32 s41, 0x07060302"); r(f"s_mov_b32 s42, {f2u(C_SCALE):#x}")
    r(f"s_mov_b32 s{S_SPIN}, 0")
    lo, hi = f2u(2.0 ** -60), f2u(2.0 ** 60)
    r(f"s_mov_b32 s{S_LO}, {lo:#x}"); r(f"s_mov_b32 s{S_RNG}, {hi-lo:#x}")
    if mode == "C":
        v("v_cvt_f32_u32 v31, v6", [6], [31]); v(f"v_mul_f32 v31, {f2u(-math.log2(10000.0) / 8):#x}, v31", [31], [31], "valu8"); v("v_exp_f32 v31, v31", [31], [31], "trans")
        G = [float(np.float32(10000.0 ** (-e / 64.0) / (2 * math.pi))) for e in range(8)]
        def sincos(posreg, cs, tmp=208):
            v(f"v_cvt_f32_u32 v{tmp+16}, v{posreg}", [posreg], [tmp + 16]); v(f"v_mul_f32 v{tmp+16}, v{tmp+16}, v31", [tmp + 16, 31], [tmp + 16])
            for e in range(8): v(f"v_mul_f32 v{tmp+e}, {f2u(G[e]):#x}, v{tmp+16}", [tmp + 16], [tmp + e], "valu8")
            for e in range(8): v(f"v_fract_f32 v{tmp+e}, v{tmp+e}", [tmp + e], [tmp + e])
            for e in range(8): v(f"v_sin_f32 v{tmp+8+e}, v{tmp+e}", [tmp + e], [tmp + 8 + e], "trans")
            for e in range(8): v(f"v_cos_f32 v{tmp+e}, v{tmp+e}", [tmp + e], [tmp + e], "trans")
            for e in range(8):
                P.append(v_cvtpk(cs + e, tmp + e, tmp + 8 + e)); P.append(v_cvtpk(cs + 8 + e, tmp + 8 + e, tmp + e))
        sincos(10, KC)
        r(f"s_mov_b32 s31, s{T0}")
        def qsincos(sg):
            r(f"s_xor_b32 s{T1}, s{S_J}, {[2,3,1,0][sg]}"); r(f"s_lshl_b32 s{T1}, s{T1}, 5"); r(f"s_add_u32 s{T1}, s{T1}, s31")
            v(f"v_add_u32 v30, s{T1}, v7", [7], [30])
            sincos(30, QD + 24 * sg + 8)
        for sg in range(cfg.get("q_sincos_early", 1)): qsincos(sg)
    v("v_lshlrev_b32 v22, 10, v6", [6], [22]); v("v_lshl_add_u32 v22, v7, 4, v22", [7, 22], [22], "valu8")
    r(f"s_lshl_b32 s{T0}, s{S_G}, 4"); r(f"s_add_u32 s{T0}, s{T0}, s{S_QB}")
    r(f"s_lshl_b32 s{S_FLG}, s{T0}, 7"); r(f"s_add_u32 s{S_FLG}, s{S_FLG}, {F_OFF}")
    r(f"s_lshl_b32 s{T0}, s{T0}, 13"); r(f"s_lshl_b32 s{T1}, s{S_W}, 7"); r(f"s_add_u32 s46, s{T0}, s{T1}")
    r(f"s_lshl_b32 s{T0}, s{S_G}, 2"); r(f"s_and_b32 s{T1}, s{S_QB}, 3"); r(f"s_add_u32 s{T0}, s{T0}, s{T1}"); r(f"s_lshl_b32 s{T0}, s{T0}, 2")
    r(f"s_lshl_b32 s{T1}, s44, 1"); r(f"s_add_u32 s{T0}, s{T0}, s{T1}"); r(f"s_lshl_b32 s{T0}, s{T0}, 13")
    r(f"s_lshr_b32 s{T1}, s{S_QB}, 2"); r(f"s_lshl_b32 s{T1}, s{T1}, 1"); r(f"s_add_u32 s{T1}, s{T1}, s43"); r(f"s_lshl_b32 s{T1}, s{T1}, 10")
    r(f"s_add_u32 s{T0}, s{T0}, s{T1}"); r(f"s_add_u32 s47, s{T0}, {V_OFF}"); r(f"s_add_u32 s45, s47, 8192")
    r(f"s_lshl_b32 s{T0}, s{S_W}, 9"); r(f"s_add_u32 s{T0}, s{T0}, {LDS_SC}")
    v("v_lshlrev_b32 v23, 3, v12", [12], [23]); v(f"v_add_u32 v23, s{T0}, v23", [23], [23])
    r(f"s_lshl_b32 s{T1}, s43, 7"); r(f"s_add_u32 s{T0}, s{T0}, s{T1}"); r(f"s_lshl_b32 s{T1}, s44, 2"); r(f"s_add_u32 s{T0}, s{T0}, s{T1}")
    v("v_lshlrev_b32 v24, 6, v13", [13], [24]); v(f"v_add_u32 v24, s{T0}, v24", [24], [24])
    r(f"s_lshl_b32 s{T0}, s{S_W}, 12"); r(f"s_add_u32 s{T0}, s{T0}, {LDS_P}")
    v("v_lshlrev_b32 v21, 11, v13", [13], [21]); v("v_lshl_add_u32 v21, v12, 2, v21", [12, 21], [21], "valu8"); v(f"v_add_u32 v21, s{T0}, v21", [21], [21])
    v("v_add_u32 v29, 128, v21", [21], [29], "valu8")
    v(f"v_mul_u32_u24 v25, {QSTR}, v6", [6], [25], "valu8"); v("v_lshl_add_u32 v25, v7, 4, v25", [7, 25], [25], "valu8")
    r(f"s_lshl_b32 s{T0}, s{S_W}, 7"); v(f"v_add_u32 v25, s{T0}, v25", [25], [25])
    v("v_lshrrev_b32 v26, 2, v6", [6], [26]); v("v_lshlrev_b32 v26, 4, v26", [26], [26]); v("v_sub_u32 v26, 16, v26", [26], [26])
    r(f"s_lshl_b32 s{T0}, s{S_G}, 4"); r(f"s_lshl_b32 s{T1}, s{S_W}, 2"); r(f"s_add_u32 s{T0}, s{T0}, s{T1}"); r(f"s_lshl_b32 s{T0}, s{T0}, 13")
    for T in range(4):
        r(f"s_add_u32 s{S_K+2*T}, s{T0}, {T*8192}"); r(f"s_add_u32 s{S_K+2*T+1}, s{T0}, {T*8192+4096}")
    r(f"s_lshl_b32 s{T0}, s{S_G}, 17"); r(f"s_lshl_b32 s{T1}, s{S_W}, 13"); r(f"s_add_u32 s{T0}, s{T0}, s{T1}"); r(f"s_add_u32 s{T0}, s{T0}, {V_OFF}")
    for T in range(4):
        r(f"s_add_u32 s{S_V+2*T}, s{T0}, {T*32768}"); r(f"s_add_u32 s{S_V+2*T+1}, s{T0}, {T*32768+4096}")
    for sg in range(3):
        r(f"s_xor_b32 s{T0}, s{S_J}, {[2,3,1][sg]}"); r(f"s_lshl_b32 s{T1}, s53, 2"); r(f"s_add_u32 s{T0}, s{T0}, s{T1}"); r(f"s_mul_i32 s{T0}, s{T0}, 3"); r(f"s_add_u32 s{T0}, s{T0}, {sg}")
        r(f"s_lshl_b32 s{T0}, s{T0}, 2"); r(f"s_add_u32 s{T0}, s{T0}, s{S_W}"); r(f"s_mul_i32 s{T0}, s{T0}, 3072"); r(f"s_add_u32 s{S_SEND+sg}, s{T0}, {M_OFF}")
    r(f"s_lshl_b32 s{T1}, s53, 2"); r(f"s_add_u32 s{T1}, s{T1}, s{S_J}"); r(f"s_mul_i32 s{T1}, s{T1}, 3")
    for sg in range(3):
        r(f"s_add_u32 s{T0}, s{T1}, {sg}"); r(f"s_lshl_b32 s{T0}, s{T0}, 2"); r(f"s_add_u32 s{T0}, s{T0}, s{S_W}"); r(f"s_mul_i32 s{T0}, s{T0}, 3072"); r(f"s_add_u32 s{S_RECV+sg}, s{T0}, {M_OFF}")
    r(f"s_lshl_b32 s{T0}, s{S_H}, 11"); r(f"s_lshl_b32 s{T1}, s{S_QB}, 7"); r(f"s_add_u32 s{T0}, s{T0}, s{T1}"); r(f"s_lshl_b32 s{T1}, s{S_J}, 5"); r(f"s_add_u32 s{T0}, s{T0}, s{T1}")
    r(f"s_lshl_b32 s{T0}, s{T0}, 8"); r(f"s_lshl_b32 s{T1}, s{S_W}, 6"); r(f"s_add_u32 s{S_OUTO}, s{T0}, s{T1}")
    r(f"s_lshl_b32 s{T0}, s{S_W}, 11"); r(f"s_add_u32 s{T0}, s{T0}, {LDS_P}")
    v(f"v_add_u32 v{PW}, s{T0}, v1", [1], [PW])
    v(f"v_lshlrev_b32 v{LR}, 5, v12", [12], [LR]); v(f"v_add_u32 v{LR}, {LDS_L}, v{LR}", [LR], [LR], "valu8")
    r(f"s_lshl_b32 s{T0}, s{S_W}, 3")
    v(f"v_lshl_add_u32 v{LW}, v13, 2, v{LR}", [13, LR], [LW], "valu8"); v(f"v_add_u32 v{LW}, s{T0}, v{LW}", [LW], [LW])
    v(f"v_lshlrev_b32 v{OUTV}, 8, v12", [12], [OUTV]); v(f"v_lshl_add_u32 v{OUTV}, v13, 4, v{OUTV}", [13, OUTV], [OUTV], "valu8")
    TS = 196
    for q_, src in enumerate((KS, KS + 1, KS + 2, KS + 3)):
        v(f"v_lshlrev_b32 v{TS+q_}, v26, v{src}", [26, src], [TS + q_]); v(f"v_and_b32 v{TS+q_}, s{S_MASK}, v{TS+q_}", [TS + q_], [TS + q_])
    v(f"v_mul_f32 v{TS}, s42, v{TS}", [TS], [TS]); v(f"v_mul_f32 v{TS+1}, s42, v{TS+1}", [TS + 1], [TS + 1])
    v(f"v_mul_f32_e64 v{TS+2}, -v{TS+2}, v{TS}", [TS, TS + 2], [TS + 2], "valu8"); v(f"v_mul_f32_e64 v{TS+3}, -v{TS+3}, v{TS+1}", [TS + 1, TS + 3], [TS + 3], "valu8")
    for d in range(8):
        v(f"v_cvt_f32_i32 v{KA+d}, v{KA+d}", [KA + d], [KA + d]); v(f"v_cvt_f32_i32 v{KB+d}, v{KB+d}", [KB + d], [KB + d])
    for d in range(8):
        v(f"v_fma_f32 v{KA+d}, v{KA+d}, v{TS}, v{TS+2}", [KA + d, TS, TS + 2], [KA + d], "valu8")
        v(f"v_fma_f32 v{KB+d}, v{KB+d}, v{TS+1}, v{TS+3}", [KB + d, TS + 1, TS + 3], [KB + d], "valu8")
    def rope(pair, cs, out, tmp):
        CL, CH, RL, RH = tmp, tmp + 8, tmp + 16, tmp + 24
        if mode == "C": CL, CH = cs, cs + 8
        else:
            for d in range(8):
                e = d >> 1; sel = "s40" if (d & 1) == 0 else "s41"
                v(f"v_perm_b32 v{CL+d}, v{cs+8+e}, v{cs+e}, {sel}", [cs + 8 + e, cs + e], [CL + d], "valu8")
                ch, sh = (cs + 4 + e, cs + 12 + e) if mode == "R" else (cs + e, cs + 8 + e)
                v(f"v_perm_b32 v{CH+d}, v{ch}, v{sh}, {sel}", [ch, sh], [CH + d], "valu8")
        for d in range(8):
            v(f"v_dot2_f32_bf16 v{RL+d}, v{pair[d]}, v{CL+d}, 0 neg_hi:[0,1,0]", [pair[d], CL + d], [RL + d], "valu8")
            v(f"v_dot2_f32_bf16 v{RH+d}, v{pair[d]}, v{CH+d}, 0", [pair[d], CH + d], [RH + d], "valu8")
        for p in range(2):
            P.append(v_cvtpk(out + 4 * p + 0, RL + 4 * p, RL + 4 * p + 1)); P.append(v_cvtpk(out + 4 * p + 1, RL + 4 * p + 2, RL + 4 * p + 3))
            P.append(v_cvtpk(out + 4 * p + 2, RH + 4 * p, RH + 4 * p + 1)); P.append(v_cvtpk(out + 4 * p + 3, RH + 4 * p + 2, RH + 4 * p + 3))
    KP = 200
    for d in range(8): P.append(v_cvtpk(KP + d, KA + d, KB + d))
    rope([KP + d for d in range(8)], KC, 240, 208)
    kst = [buf_store(240, 4, 22, S_WS, "s46", 0, "sc1"), buf_store(244, 4, 22, S_WS, "s46", 512, "sc1")]
    P += kst
    if st: r("s_memtime s[6:7]")
    P.append(ds_write64(23, VS, 0)); P.append(ds_write64(23, VS + 2, 256))
    SCV = 128
    for jj in range(0, 8, 2): P.append(ds_read2_32(SCV + jj, 24, 2 * jj, 2 * jj + 2))
    for jj in range(0, 8, 2): P.append(ds_read2_32(SCV + 8 + jj, 24, 64 + 2 * jj, 64 + 2 * jj + 2))
    w_ = I("s_nop 0", "raw"); w_.aux = {"need": vdma}; P.append(w_)
    for e in range(2):
        for jj in range(0, 8, 2):
            P.append(I(f"ds_read2st64_b32 v[{VD+8*e+jj}:{VD+8*e+jj+1}], v{21+0*e}" + (f" offset0:{jj} offset1:{jj+1}") if e == 0 else
                       f"ds_read2st64_b32 v[{VD+8*e+jj}:{VD+8*e+jj+1}], v29 offset0:{jj} offset1:{jj+1}", "dsr", ["v21", "v29"], [f"v{VD+8*e+jj}", f"v{VD+8*e+jj+1}"]))
    for e in range(2):
        for jj in range(8):
            x = VD + 8 * e + jj
            v(f"v_cvt_f32_i32 v{x}, v{x}", [x], [x])
    for e in range(2):
        for jj in range(8):
            x = VD + 8 * e + jj
            if e == 0:
                v(f"v_lshlrev_b32 v144, 16, v{SCV+jj}", [SCV + jj], [144]); v(f"v_lshlrev_b32 v145, 16, v{SCV+8+jj}", [SCV + 8 + jj], [145])
            else:
                v(f"v_and_b32 v144, s{S_MASK}, v{SCV+jj}", [SCV + jj], [144]); v(f"v_and_b32 v145, s{S_MASK}, v{SCV+8+jj}", [SCV + 8 + jj], [145])
            v(f"v_sub_f32 v{x}, v{x}, v145", [x, 145], [x]); v(f"v_mul_f32 v{x}, v{x}, v144", [x, 144], [x])
        for q_ in range(4): P.append(v_cvtpk(248 + q_ if e == 0 else 148 + q_, VD + 8 * e + 2 * q_, VD + 8 * e + 2 * q_ + 1))
    vst = [buf_store(248, 4, 1, S_WS, "s47", 0, "sc1"), buf_store(148, 4, 1, S_WS, "s45", 0, "sc1")]
    P += vst
    if st: r("s_memtime s[8:9]")
    def qrope(sg):
        b = QD + 24 * sg
        QP = 200
        if mode == "C" and sg >= cfg.get("q_sincos_early", 1): qsincos(sg)
        for d in range(8):
            e = d >> 1; sel = "s40" if (d & 1) == 0 else "s41"
            v(f"v_perm_b32 v{QP+d}, v{b+4+e}, v{b+e}, {sel}", [b + 4 + e, b + e], [QP + d], "valu8")
        out = 152 + 8 * (sg & 1)
        rope([QP + d for d in range(8)], b + 8, out, 208)
        P.append(ds_write128(25, out, sg * QSLOT)); P.append(ds_write128(25, out + 4, sg * QSLOT + 512))
    nq1 = cfg.get("nq_before_flag", 1)
    if cfg.get("q_loads_before_rope", False):
        for sg in range(early_q, 4): qloads(sg)
    for sg in range(min(nq1, early_q)): qrope(sg)
    if not cfg.get("q_loads_before_rope", False):
        for sg in range(early_q, 4): qloads(sg)
    for sg in range(min(nq1, early_q), nq1): qrope(sg)
    r("s_waitcnt lgkmcnt(0)")
    r(f"s_add_u32 s{S_EK}, s{S_EK}, {EC1:#x}"); r(f"s_add_u32 s{S_EK+1}, s{S_EK+1}, {EC2:#x}"); r(f"s_add_u32 s{S_EM}, s{S_EM}, {EC1:#x}"); r(f"s_add_u32 s{S_EM+1}, s{S_EM+1}, {EC2:#x}")
    v(f"v_mov_b32 v26, s{S_EK}", [], [26]); v(f"v_mov_b32 v27, s{S_EK+1}", [], [27]); v(f"v_mov_b32 v16, s{S_FLG}", [], [16])
    b = barrier(); b.aux = {"need": kst + vst}; P.append(b)
    def flag_store(lbl, off):
        r(f"s_cmp_lg_u32 s{S_W}, 0"); r(f"s_cbranch_scc1 {lbl}", "br")
        r("s_mov_b64 exec, 1")
        r(f"buffer_store_dwordx2 v[26:27], v16, s[{S_WS}:{S_WS+3}], 0 offen offset:{off} sc1", "raw")
        r("s_mov_b64 exec, -1")
        r(f"{lbl}:", "label")
    flag_store("L_kf", 0)
    if st: r("s_memtime s[10:11]")
    nq2 = cfg.get("nq_before_poll", 3)
    for sg in range(nq1, nq2): qrope(sg)
    if st: r("s_memtime s[12:13]")
    main, pre = main_sched(cfg)
    def kvload(kind, T):
        out = []
        for s in range(8):
            base = (S_K if kind == "K" else S_V) + 2 * T + (s >> 2)
            dst = (0 if kind == "K" else 128) + 32 * T + 4 * s
            out.append(buf_load("a", dst, 4, L16, S_WS, f"s{base}", (s & 3) * 1024, cfg.get("kvflags", "sc1")))
        return out
    def poll(lbl, lo):
        r(f"s_cmp_lg_u32 s{S_W}, 0"); r(f"s_cbranch_scc1 {lbl}_done", "br")
        r(f"s_lshl_b32 s{T0}, s{S_G}, 11"); r(f"s_add_u32 s{T0}, s{T0}, {F_OFF}")
        r("v_lshlrev_b32 v16, 7, v0", "valu", ["v0"], ["v16"])
        r("s_mov_b64 exec, 0xffff")
        r(f"{lbl}:", "label")
        r(f"buffer_load_dwordx2 v[26:27], v16, s[{S_WS}:{S_WS+3}], s{T0} offen offset:{lo} sc1")
        r(f"s_add_u32 s{S_SPIN}, s{S_SPIN}, 1"); r(f"s_cmp_gt_u32 s{S_SPIN}, {SPIN}"); r(f"s_cbranch_scc1 {lbl}_out", "br")
        r("s_waitcnt vmcnt(0)", "rawx")
        r(f"v_cmp_ne_u64 vcc, s[{S_EK}:{S_EK+1}], v[26:27]")
        r(f"s_cbranch_vccnz {lbl}", "br")
        r(f"{lbl}_out:", "label")
        r("s_mov_b64 exec, -1")
        r(f"{lbl}_done:", "label")
    poll("L_pk", 0)
    r("s_waitcnt lgkmcnt(0)")
    r("s_barrier")
    if st: r("s_memtime s[4:5]")
    for c in pre[:2]: P += kvload(c[1], c[2])
    for sg in range(nq2, 4): qrope(sg)
    for g_ in range(3): v(f"v_mov_b32 v{MT+4*g_+3}, s{S_EM}", [], [MT + 4 * g_ + 3])
    for c in pre[2:]: P += kvload(c[1], c[2])
    for s in range(8): P.append(ds_read128(QREG[0] + 4 * s, L16, LDS_Q + s * QSTR))
    r(f"s_or_b32 s{T0}, s{S_QB}, s{S_W}"); r(f"s_cmp_lg_u32 s{T0}, 0"); r("s_cbranch_scc1 L_noxk", "br")
    r(f"v_mov_b32 v26, s{S_EK}", "valu", [], ["v26"]); r(f"v_mov_b32 v27, s{S_EK+1}", "valu", [], ["v27"]); r(f"v_mov_b32 v16, s{S_XKA}", "valu", [], ["v16"])
    r("s_mov_b64 exec, 1")
    P.append(I(f"buffer_store_dwordx2 v[26:27], v16, s[{S_WS}:{S_WS+3}], 0 offen sc1", "raw"))
    r("s_mov_b64 exec, -1")
    r("L_noxk:", "label")
    T_ = []
    def t(x, k="raw", rd=(), wr=()): T_.append(I(x, k, rd, wr))
    ns = len(st) if st else 0
    late = cfg.get("tail_recv", [2])
    for sg in late:
        for g in range(3): T_.append(buf_load("v", RCV[sg] + 4 * g, 4, L16, S_WS, f"s{S_RECV+sg}", g * 1024, "sc1"))
    O = OREG[3]
    slotreg = [0, 1, 2, 4, 5, 6, 8, 9]
    t(f"s_mov_b64 s[{S_BAD}:{S_BAD+1}], 0")
    def chk(sg):
        for g in range(3):
            T_.append(I(f"v_cmp_ne_u32 vcc, s{S_EM}, v{RCV[sg]+4*g+3}", "valu", [f"v{RCV[sg]+4*g+3}"], ["vcc"]))
            t(f"s_or_b64 s[{S_BAD}:{S_BAD+1}], s[{S_BAD}:{S_BAD+1}], vcc")
    def acc(sg, first):
        for k in range(8):
            src = RCV[sg] + slotreg[k]
            for hh in range(2):
                dst = ACC + 2 * k + hh
                txt = (lambda d: f"v_lshlrev_b32 v{d}, 16, v{src}") if hh == 0 else (lambda d: f"v_and_b32 v{d}, s{S_MASK}, v{src}")
                if first: T_.append(I(txt(dst), "valu", [f"v{src}"], [f"v{dst}"]))
                else:
                    T_.append(I(txt(LT + 2 + hh), "valu", [f"v{src}"], [f"v{LT+2+hh}"])); T_.append(v_add(dst, dst, LT + 2 + hh))
    T_.append(nop(3))
    chk(0); chk(1); acc(0, True); acc(1, False)
    for k in range(16): T_.append(v_add(ACC + k, ACC + k, O + k))
    chk(2)
    t(f"s_cmp_lg_u64 s[{S_BAD}:{S_BAD+1}], 0")
    t("s_cbranch_scc1 RELOAD", "br")
    t("RBACK:", "label")
    if st: t(f"s_memtime s[{14+2*ns}:{15+2*ns}]")
    for sg in range(3): T_.append(v_add(LREG + 3, LREG + 3, RCV[sg] + 10))
    T_.append(v_rcp(LT, LREG + 3))
    acc(2, False)
    for k in range(16): T_.append(v_mul(ACC + k, ACC + k, LT))
    D = SB[0]
    for k in range(8): T_.append(v_cvtpk(D + k, ACC + 2 * k, ACC + 2 * k + 1))
    for Rr in (0, 2):
        for dd in range(2):
            T_.append(I(f"v_permlane32_swap_b32 v{D+2*Rr+dd}, v{D+2*Rr+2+dd}", "perm", [f"v{D+2*Rr+dd}", f"v{D+2*Rr+2+dd}"], [f"v{D+2*Rr+dd}", f"v{D+2*Rr+2+dd}"]))
    for Rr in (0, 2):
        T_.append(buf_store(D + 2 * Rr, 4, OUTV, S_OUT, f"s{S_OUTO}", Rr * 16, cfg.get("outflags", "")))
    if st:
        t(f"s_memtime s[{16+2*ns}:{17+2*ns}]")
        t("s_waitcnt vmcnt(0)")
        t(f"s_memtime s[{18+2*ns}:{19+2*ns}]"); t("s_memrealtime s[30:31]")
        t("s_waitcnt lgkmcnt(0)")
        t(f"s_lshl_b32 s{T0}, s2, 2"); t(f"s_add_u32 s{T0}, s{T0}, s{S_W}"); t(f"s_lshl_b32 s{T0}, s{T0}, 7"); t(f"s_add_u32 s{T0}, s{T0}, {ST_OFF}")
        t(f"v_mov_b32 v12, s{T0}", "valu", [], ["v12"])
        t("v_mov_b32 v100, s98", "valu", [], [])
        order_ = [100, 6, 8, 10, 12, 4] + [14 + 2 * k for k in range(ns + 3)]
        for k, sreg in enumerate(order_):
            t(f"s_sub_u32 s{T0}, s{sreg}, s96"); t(f"v_mov_b32 v{101+k}, s{T0}", "valu", [], [])
        t(f"v_mov_b32 v130, s{S_SPIN}", "valu", [], []); t("v_mov_b32 v131, s30", "valu", [], [])
        t("s_mov_b64 exec, 1")
        for q in range(8): t(f"buffer_store_dwordx4 v[{100+4*q}:{103+4*q}], v12, s[{S_WS}:{S_WS+3}], 0 offen offset:{16*q}")
        t("s_mov_b64 exec, -1")
    if cfg.get("mstamps"):
        ms = cfg["mstamps"]
        t("s_waitcnt vmcnt(0) lgkmcnt(0)")
        t(f"s_lshl_b32 s{T0}, s2, 2"); t(f"s_add_u32 s{T0}, s{T0}, s{S_W}"); t(f"s_lshl_b32 s{T0}, s{T0}, 7"); t(f"s_add_u32 s{T0}, s{T0}, {ST_OFF}")
        t(f"v_mov_b32 v12, s{T0}", "valu", [], ["v12"])
        for k in range(32):
            if k < len(ms):
                t(f"s_sub_u32 s{T0}, s{MPAIRS[k]}, s{MPAIRS[0]}"); t(f"v_mov_b32 v{100+k}, s{T0}", "valu", [], [])
            else: t(f"v_mov_b32 v{100+k}, 0", "valu", [], [])
        t("s_mov_b64 exec, 1")
        for q in range(8): t(f"buffer_store_dwordx4 v[{100+4*q}:{103+4*q}], v12, s[{S_WS}:{S_WS+3}], 0 offen offset:{16*q}")
        t("s_mov_b64 exec, -1")
    if cfg.get("dbgstat"):
        t("s_waitcnt vmcnt(0)")
        t("s_memrealtime s[30:31]"); t("s_memtime s[28:29]")
        t("s_load_dwordx2 s[26:27], s[0:1], 96")
        t("s_waitcnt lgkmcnt(0)")
        t("v_mov_b32 v12, 0", "valu", [], [])
        vals = [("s30", None), ("s98", "not"), ("s28", "sub"), ("s14", "sub"), ("s4", "sub"), ("s10", "sub"), ("s6", "sub"), ("s28", "subnot"), ("s100", "sub"), ("s8", "sub")]
        t("s_mov_b64 exec, 1")
        for k, (sr_, op) in enumerate(vals):
            if op is None: t(f"s_mov_b32 s{T0}, {sr_}")
            elif op == "not": t(f"s_not_b32 s{T0}, {sr_}")
            elif op == "sub": t(f"s_sub_u32 s{T0}, {sr_}, s96")
            else: t(f"s_sub_u32 s{T0}, {sr_}, s96"); t(f"s_not_b32 s{T0}, s{T0}")
            t(f"v_mov_b32 v13, s{T0}", "valu", [], [])
            t(f"global_atomic_umax v12, v13, s[26:27] offset:{4*k}")
            t("s_waitcnt vmcnt(0)")
        t("s_mov_b64 exec, -1")
    t(f"s_or_b32 s{T0}, s{S_J}, s{S_W}"); t(f"s_cmp_lg_u32 s{T0}, 0"); t("s_cbranch_scc1 A_end", "br")
    t(f"v_mov_b32 v6, s{S_EM}", "valu", [], ["v6"]); t(f"v_mov_b32 v7, s{S_EM+1}", "valu", [], ["v7"]); t(f"v_mov_b32 v12, s{S_XMA}", "valu", [], ["v12"])
    t("s_mov_b64 exec, 1")
    t(f"buffer_store_dwordx2 v[6:7], v12, s[{S_WS}:{S_WS+3}], 0 offen sc1")
    t("A_end:", "label"); t("s_endpgm")
    X = []
    def x(s_, k="raw", rd=(), wr=()): X.append(I(s_, k, rd, wr))
    x("RELOAD:", "label")
    for sg in range(3):
        for g in range(3): X.append(buf_load("v", RCV[sg] + 4 * g, 4, L16, S_WS, f"s{S_RECV+sg}", g * 1024, "sc1"))
    x("s_waitcnt vmcnt(0)")
    x(f"s_mov_b64 s[{S_BAD}:{S_BAD+1}], 0")
    for sg in range(3):
        for g in range(3):
            x(f"v_cmp_ne_u32 vcc, s{S_EM}, v{RCV[sg]+4*g+3}")
            x(f"s_or_b64 s[{S_BAD}:{S_BAD+1}], s[{S_BAD}:{S_BAD+1}], vcc")
    x(f"s_add_u32 s{S_SPIN}, s{S_SPIN}, 1"); x(f"s_cmp_gt_u32 s{S_SPIN}, {SPIN}"); x("s_cbranch_scc1 RELOAD_GO", "br")
    x(f"s_cmp_lg_u64 s[{S_BAD}:{S_BAD+1}], 0")
    x("s_cbranch_scc1 RELOAD", "br")
    x("RELOAD_GO:", "label")
    for k in range(8):
        for hh in range(2):
            dst = ACC + 2 * k + hh
            s0 = RCV[0] + slotreg[k]; s1 = RCV[1] + slotreg[k]
            if hh == 0: x(f"v_lshlrev_b32 v{dst}, 16, v{s0}"); x(f"v_lshlrev_b32 v{LT+2}, 16, v{s1}")
            else: x(f"v_and_b32 v{dst}, s{S_MASK}, v{s0}"); x(f"v_and_b32 v{LT+2}, s{S_MASK}, v{s1}")
            x(f"v_add_f32 v{dst}, v{dst}, v{LT+2}"); x(f"v_add_f32 v{dst}, v{dst}, v{O+2*k+hh}")
    x("s_branch RBACK", "br")
    for sl in range(4):
        x(f"SLOW_{sl}:", "label"); x("s_endpgm")
    lin = insert_waits(P + main + [nop(7)] + T_)
    lin, nfix = fix_hazards(lin)
    print("hazard nops inserted:", nfix, " code bytes ~", sum(nbytes(i) for i in lin), "instrs", len(lin))
    hdr = HEADER_COMMENT + f"; @launch grid=(256,1,1) block=(256,1,1) lds={LDS_SIZE}\n"
    hdr += '.amdgcn_target "amdgcn-amd-amdhsa--gfx950"\n.text\n'
    txt = hdr + f".globl {MAIN}\n.p2align 8\n.type {MAIN},@function\n{MAIN}:\nKSTART:\n" + emit(lin) + emit(X)
    txt += ".p2align 10\n.fill 4096, 4, 0xbf810000\n"
    txt += '.section .rodata,"a"\n' + kd(MAIN, 512, 256)
    open(fname, "w").write(txt)

SEQ_EARLY = [("S",0),("S",1),("S",2)] + sum([[("P",n),("S",n+3)] for n in range(10)], []) + [("P",10),("P",11),("S",13),("S",14),("P",12),("S",15),("P",13),("P",14),("P",15)]
def dbg():
    base = {"seq": SEQ_EARLY, "recv_gap": [240, 246], "msg_dl": [10, 10, 1], "msg_space": [3, 3, 2], "nq_before_flag": 2, "q_loads_before_rope": True, "cs": "C", "q_sincos_early": 2}
    build(dict(base, stamps=[0, 64, 128, 192, 255], dbgstat=True), "v7C_dbg.s")
if __name__ == "__main__":
    dbg()
    base = {"seq": SEQ_EARLY, "recv_gap": [240, 246], "msg_dl": [10, 10, 1], "msg_space": [3, 3, 2], "nq_before_flag": 2, "q_loads_before_rope": True}
    for m in "HC":
        cfg = dict(base, cs=m)
        if m == "C": cfg["q_sincos_early"] = 2
        build(cfg, f"v7{m}.s")
        build(dict(cfg, stamps=[0, 64, 128, 192, 255]), f"v7{m}_st.s")
```
